```python
import torch

def _softmax(x, axis=-1):
    return torch.softmax(x, dim=axis)
def _gelu(x):
    return torch.nn.functional.gelu(x, approximate="tanh")
def _silu(x):
    return torch.nn.functional.silu(x)
def _sigmoid(x):
    return torch.sigmoid(x)
def _layernorm(x, axis=-1, eps=1e-5):
    m = x.mean(dim=axis, keepdim=True)
    v = x.var(dim=axis, keepdim=True, unbiased=False)
    return (x - m) / torch.sqrt(v + eps)
def _scatter_add(tgt, idx, src, axis=0):
    return tgt.clone().index_add_(axis, idx, src)
def _segment_sum(src, seg, n):
    out = torch.zeros((n,) + src.shape[1:], dtype=src.dtype)
    return out.index_add_(0, seg, src)
def _pad(x, pw):
    flat = tuple(v for pair in reversed(pw) for v in pair)
    return torch.nn.functional.pad(x, flat)

kernel_name = 'parallel_sum__sliding_block_cached__swiglu_ffn__decode'

def setup_inputs():

    _w = (lambda a: (lambda t: t.to(torch.bfloat16) if t.is_floating_point() else t)(torch.as_tensor(a)))
    def _A_setup():
        B, Sq, D = 2, 1, 512
        Hq, Hkv, Sk, Dh = 32, 8, 32768, 128
        assert Hq % Hkv == 0, (Hq, Hkv)
        return {
            "x": _w((lambda *s: torch.randn(*s, dtype=torch.bfloat16) * 0.05)(B, Sq, D)),
            "k_cache": _w((lambda *s: torch.randn(*s, dtype=torch.bfloat16) * 3.2)(B, Hkv, Sk, Dh)),
            "v_cache": _w((lambda *s: torch.randn(*s, dtype=torch.bfloat16) * 1.6)(B, Hkv, Sk, Dh)),
            "wq": _w((lambda *s: torch.randn(*s, dtype=torch.bfloat16) * 3.2)(D, Hq * Dh) * (D ** -0.5)),
            "wo": _w((lambda *s: torch.randn(*s, dtype=torch.bfloat16) * 1.6)(Hq * Dh, D) * ((Hq * Dh) ** -0.5)),
        }
    _A_in = _A_setup()

    def _B_setup():
        B, S, D, F = 2, 1, 512, 1792
        return {
            "x": _w((lambda *s: torch.randn(*s, dtype=torch.bfloat16) * 0.05)(B, S, D)),
            "w_gate": _w((lambda *s: torch.randn(*s, dtype=torch.bfloat16) * 0.05)(D, F)),
            "w_up": _w((lambda *s: torch.randn(*s, dtype=torch.bfloat16) * 0.05)(D, F)),
            "w_down": _w((lambda *s: torch.randn(*s, dtype=torch.bfloat16) * 0.05)(F, D)),
        }
    _B_in = _B_setup()

    return {
        "A_x": _A_in["x"],
        "A_k_cache": _A_in["k_cache"],
        "A_v_cache": _A_in["v_cache"],
        "A_wq": _A_in["wq"],
        "A_wo": _A_in["wo"],
        "B_x": _B_in["x"],
        "B_w_gate": _B_in["w_gate"],
        "B_w_up": _B_in["w_up"],
        "B_w_down": _B_in["w_down"],
    }

def reference(A_x, A_k_cache, A_v_cache, A_wq, A_wo, B_x, B_w_gate, B_w_up, B_w_down):
    def _A_ref(x, k_cache, v_cache, wq, wo):
        B, Sq, D = x.shape
        Hq, Dh = 32, 128
        Hkv, Sk = k_cache.shape[1], k_cache.shape[2]
        W = min(4096, max(256, Sk // 4))
        rep = Hq // Hkv
        q = (lambda x, *d: x.permute(*d))((x @ wq).reshape(B, Sq, Hq, Dh), 0, 2, 1, 3)
        k = (lambda x, n, axis: torch.repeat_interleave(x, n, dim=axis))(k_cache[:, :, Sk - W:, :], rep, axis=1)
        v = (lambda x, n, axis: torch.repeat_interleave(x, n, dim=axis))(v_cache[:, :, Sk - W:, :], rep, axis=1)
        scores = torch.einsum("bhqd,bhkd->bhqk", q, k) * (Dh ** -0.5)
        p = _softmax(scores, axis=-1)
        o = torch.einsum("bhqk,bhkd->bhqd", p, v)
        return (lambda x, *d: x.permute(*d))(o, 0, 2, 1, 3).reshape(B, Sq, Hq * Dh) @ wo

    def _B_ref(x, w_gate, w_up, w_down):
        g = _silu(x @ w_gate)
        u = x @ w_up
        return (g * u) @ w_down

    x = A_x
    xn = _layernorm(x, axis=-1)
    return x + _A_ref(xn, A_k_cache, A_v_cache, A_wq, A_wo) + _B_ref(xn, B_w_gate, B_w_up, B_w_down)
```

```python
import struct
import sys

NAME = "parallel_sum__sliding_block_cached__swiglu_ffn__decode"


def f2h(x):
    return "0x%08x" % struct.unpack("<I", struct.pack("<f", x))[0]


LOG2E = f2h(1.4426950408889634)
SCALE = f2h(128 ** -0.5)
EPS = f2h(1e-5)

L_K = 0
L_V = 65536
L_XN = 131072
L_RED = 135168
L_Q = 151552
L_MW = 152576
L_NONCE = 152704
L_FIN = 152720
LDS_BYTES = 153600

W_QP = 0x0
W_GU = 0x40000
W_ML = 0x80000
W_OP = 0x100000
W_FP = 0x200000

SPIN_LIMIT = 1 << 22

out = []


def e(s=""):
    out.append("    " + s if s and not s.endswith(":") else s)


def lab(s):
    out.append(s + ":")


def vr(b, n):
    return "v[%d:%d]" % (b, b + n - 1)


def rnd_bf16(dst, src):
    e("v_cvt_pk_bf16_f32 v%d, v%d, v%d" % (dst, src, src))
    e("v_lshlrev_b32 v%d, 16, v%d" % (dst, dst))


def red16(op, v):
    for n in (8, 4, 2, 1):
        e("s_nop 1")
        e("%s_dpp v%d, v%d, v%d row_ror:%d row_mask:0xf bank_mask:0xf" % (op, v, v, v, n))


def red_rows(op, v, t):
    e("v_mov_b32 v%d, v%d" % (t, v))
    e("s_nop 1")
    e("v_permlane16_swap_b32 v%d, v%d" % (v, t))
    e("s_nop 1")
    e("%s v%d, v%d, v%d" % (op, v, v, t))
    e("v_mov_b32 v%d, v%d" % (t, v))
    e("s_nop 1")
    e("v_permlane32_swap_b32 v%d, v%d" % (v, t))
    e("s_nop 1")
    e("%s v%d, v%d, v%d" % (op, v, v, t))


_pl = [0]


def poll(loads, grans, tmp, scnt="s60", nlo="s50", nhi="s51"):
    _pl[0] += 1
    L = "L_poll%d" % _pl[0]
    D = "L_polld%d" % _pl[0]
    e("s_mov_b32 %s, 0" % scnt)
    lab(L)
    for l in loads:
        e(l)
    e("s_waitcnt vmcnt(0)")
    first = True
    for g in grans:
        if first:
            e("v_xor_b32 v%d, %s, v%d" % (tmp, nlo, g + 2))
            e("v_xor_b32 v%d, %s, v%d" % (tmp + 1, nhi, g + 3))
            e("v_or_b32 v%d, v%d, v%d" % (tmp, tmp, tmp + 1))
            first = False
        else:
            e("v_xor_b32 v%d, %s, v%d" % (tmp + 1, nlo, g + 2))
            e("v_or_b32 v%d, v%d, v%d" % (tmp, tmp, tmp + 1))
            e("v_xor_b32 v%d, %s, v%d" % (tmp + 1, nhi, g + 3))
            e("v_or_b32 v%d, v%d, v%d" % (tmp, tmp, tmp + 1))
    e("v_cmp_eq_u32 vcc, 0, v%d" % tmp)
    e("s_nop 1")
    e("s_cmp_eq_u64 vcc, -1")
    e("s_cbranch_scc1 %s" % D)
    e("s_add_u32 %s, %s, 1" % (scnt, scnt))
    e("s_cmp_lt_u32 %s, %d" % (scnt, SPIN_LIMIT))
    e("s_sleep 1")
    e("s_cbranch_scc1 %s" % L)
    lab(D)


header = """; Kernarg layout for this problem (96 bytes, ptrs only, base s[0:1]):
;   offset   0: d_in[0] A_x  shape=(2, 1, 512) dtype=bfloat16 strides=(1024, 1024, 2) contiguous=True
;   offset   8: d_in[1] A_k_cache  shape=(2, 8, 32768, 128) dtype=bfloat16 strides=(67108864, 8388608, 256, 2) contiguous=True
;   offset  16: d_in[2] A_v_cache  shape=(2, 8, 32768, 128) dtype=bfloat16 strides=(67108864, 8388608, 256, 2) contiguous=True
;   offset  24: d_in[3] A_wq  shape=(512, 4096) dtype=bfloat16 strides=(8192, 2) contiguous=True
;   offset  32: d_in[4] A_wo  shape=(4096, 512) dtype=bfloat16 strides=(1024, 2) contiguous=True
;   offset  40: d_in[5] B_x  shape=(2, 1, 512) dtype=bfloat16 strides=(1024, 1024, 2) contiguous=True
;   offset  48: d_in[6] B_w_gate  shape=(512, 1792) dtype=bfloat16 strides=(3584, 2) contiguous=True
;   offset  56: d_in[7] B_w_up  shape=(512, 1792) dtype=bfloat16 strides=(3584, 2) contiguous=True
;   offset  64: d_in[8] B_w_down  shape=(1792, 512) dtype=bfloat16 strides=(1024, 2) contiguous=True
;   offset  72: d_out     shape=(2, 1, 512) dtype=bfloat16 (2 bytes/elem)
;   offset  80: d_debug   256 bytes
;   offset  88: d_ws      536870912 bytes workspace (unspecified values whenever your kernel or launch list starts; a list's later launches find what earlier ones wrote)
; Override launch geometry by editing the next line (default: block=256,
; grid=ceil(out_elems/256), lds=0). Harness parses it; keep it on one line.
; @launch grid=(256,1,1) block=(512,1,1) lds=%d
.amdgcn_target "amdgcn-amd-amdhsa--gfx950"
.text
.globl %s_kernel
.p2align 8
.type %s_kernel,@function
%s_kernel:""" % (LDS_BYTES, NAME, NAME, NAME)
out.append(header)

e("s_cmp_ge_u32 s2, 256")
e("s_cbranch_scc1 L_end")
e("s_load_dwordx16 s[16:31], s[0:1], 0")
e("s_load_dwordx8 s[32:39], s[0:1], 64")
e("v_lshrrev_b32 v1, 6, v0")
e("v_and_b32 v2, 63, v0")
e("s_nop 0")
e("v_readfirstlane_b32 s3, v1")
e("s_lshr_b32 s4, s2, 4")
e("s_and_b32 s5, s2, 15")
e("s_waitcnt lgkmcnt(0)")
e("s_cmp_ge_u32 s3, 4")
e("s_cbranch_scc1 L_comm")

vKpat, vVpat = 8, 12
vQ = 16
vKaddr = 32
vVaddr = 36
vS = 44
vP = 60
vO = 68
vFrag = 100
vT = 164
vNon = 180
vM, vL = 182, 183

e("s_lshl_b32 s6, s4, 23")
e("s_lshl_b32 s7, s5, 16")
e("s_add_u32 s6, s6, s7")
e("s_lshl_b32 s44, s3, 14")
e("s_add_u32 s6, s6, s44")
e("s_add_u32 s6, s6, %d" % (28672 * 256))
e("s_add_u32 s40, s18, s6")
e("s_addc_u32 s41, s19, 0")
e("s_add_u32 s42, s20, s6")
e("s_addc_u32 s43, s21, 0")
e("v_lshrrev_b32 v3, 4, v2")
e("v_and_b32 v4, 15, v2")
e("v_lshlrev_b32 v5, 8, v3")
for j in range(4):
    e("v_add_u32 v6, %d, v3" % (4 * j))
    e("v_xor_b32 v7, v6, v4")
    e("v_lshl_add_u32 v%d, v7, 4, v5" % (vKpat + j))
    e("v_and_b32 v6, 7, v6")
    e("v_lshlrev_b32 v6, 1, v6")
    e("v_xor_b32 v7, v6, v4")
    e("v_lshl_add_u32 v%d, v7, 4, v5" % (vVpat + j))
for grp in range(4):
    e("s_add_u32 s45, s44, %d" % (L_K + grp * 4096))
    e("s_mov_b32 m0, s45")
    e("s_nop 0")
    for j in range(4):
        e("global_load_lds_dwordx4 v%d, s[40:41] offset:%d" % (vKpat + j, j * 1024))
    e("s_add_u32 s40, s40, 4096")
    e("s_addc_u32 s41, s41, 0")
for grp in range(4):
    e("s_add_u32 s45, s44, %d" % (L_V + grp * 4096))
    e("s_mov_b32 m0, s45")
    e("s_nop 0")
    for j in range(4):
        e("global_load_lds_dwordx4 v%d, s[42:43] offset:%d" % (vVpat + j, j * 1024))
    e("s_add_u32 s42, s42, 4096")
    e("s_addc_u32 s43, s43, 0")
e("v_lshlrev_b32 v5, 8, v4")
e("v_add_u32 v5, s44, v5")
for kk in range(4):
    e("v_add_u32 v6, %d, v3" % (kk * 4))
    e("v_xor_b32 v6, v6, v4")
    e("v_lshl_add_u32 v%d, v6, 4, v5" % (vKaddr + kk))
e("v_lshrrev_b32 v6, 2, v2")
e("v_and_b32 v7, 3, v2")
e("v_lshlrev_b32 v5, 8, v6")
e("v_lshl_add_u32 v5, v7, 3, v5")
e("v_add_u32 v5, s44, v5")
e("v_add_u32 v5, %d, v5" % L_V)
e("v_and_b32 v6, 7, v6")
for dt in range(8):
    e("v_xor_b32 v7, %d, v6" % dt)
    e("v_lshl_add_u32 v%d, v7, 5, v5" % (vVaddr + dt))
e("v_and_b32 v6, 3, v2")
e("v_lshlrev_b32 v6, 8, v6")
e("v_lshl_add_u32 v6, v3, 4, v6")
e("v_add_u32 v6, %d, v6" % L_Q)
e("v_mov_b32 v7, %d" % L_NONCE)
e("s_barrier")
e("s_barrier")
for kk in range(4):
    e("ds_read_b128 %s, v6 offset:%d" % (vr(vQ + kk * 4, 4), kk * 64))
e("ds_read_b64 %s, v7" % vr(vNon, 2))
e("s_waitcnt vmcnt(16)")
for t in range(4):
    for kk in range(4):
        e("ds_read_b128 %s, v%d offset:%d" % (vr(vFrag + (t * 4 + kk) * 4, 4), vKaddr + kk, t * 4096))
e("s_waitcnt lgkmcnt(0)")
for t in range(4):
    for kk in range(4):
        c = "0" if kk == 0 else vr(vS + t * 4, 4)
        e("v_mfma_f32_16x16x32_bf16 %s, %s, %s, %s" % (vr(vS + t * 4, 4), vr(vFrag + (t * 4 + kk) * 4, 4), vr(vQ + kk * 4, 4), c))
e("s_nop 7")
e("s_nop 3")
e("s_mov_b32 s46, %s" % SCALE)
e("s_mov_b32 s47, %s" % LOG2E)
for k in range(8):
    a, b2 = vS + 2 * k, vS + 2 * k + 1
    e("v_cvt_pk_bf16_f32 v%d, v%d, v%d" % (vT, a, b2))
    e("v_lshlrev_b32 v%d, 16, v%d" % (a, vT))
    e("v_and_b32 v%d, 0xffff0000, v%d" % (b2, vT))
    e("v_mul_f32 v%d, s46, v%d" % (a, a))
    e("v_mul_f32 v%d, s46, v%d" % (b2, b2))
    e("v_cvt_pk_bf16_f32 v%d, v%d, v%d" % (vT, a, b2))
    e("v_lshlrev_b32 v%d, 16, v%d" % (a, vT))
    e("v_and_b32 v%d, 0xffff0000, v%d" % (b2, vT))
e("v_max3_f32 v%d, v%d, v%d, v%d" % (vM, vS, vS + 1, vS + 2))
for k in range(3, 15, 2):
    e("v_max3_f32 v%d, v%d, v%d, v%d" % (vM, vM, vS + k, vS + k + 1))
e("v_max_f32 v%d, v%d, v%d" % (vM, vM, vS + 15))
red_rows("v_max_f32", vM, vT)
for k in range(16):
    e("v_sub_f32 v%d, v%d, v%d" % (vS + k, vS + k, vM))
    e("v_mul_f32 v%d, s47, v%d" % (vS + k, vS + k))
    e("v_exp_f32 v%d, v%d" % (vS + k, vS + k))
e("s_nop 0")
e("v_add_f32 v%d, v%d, v%d" % (vL, vS, vS + 1))
for k in range(2, 16):
    e("v_add_f32 v%d, v%d, v%d" % (vL, vL, vS + k))
for k in range(8):
    e("v_cvt_pk_bf16_f32 v%d, v%d, v%d" % (vP + k, vS + 2 * k, vS + 2 * k + 1))
red_rows("v_add_f32", vL, vT)
e("s_waitcnt vmcnt(0)")
for s in range(2):
    for dt in range(8):
        base = vFrag + (s * 8 + dt) * 4
        e("ds_read_b64_tr_b16 %s, v%d offset:%d" % (vr(base, 2), vVaddr + dt, s * 8192))
        e("ds_read_b64_tr_b16 %s, v%d offset:%d" % (vr(base + 2, 2), vVaddr + dt, s * 8192 + 4096))
e("s_waitcnt lgkmcnt(0)")
for s in range(2):
    for dt in range(8):
        c = "0" if s == 0 else vr(vO + dt * 4, 4)
        e("v_mfma_f32_16x16x32_bf16 %s, %s, %s, %s" % (vr(vO + dt * 4, 4), vr(vFrag + (s * 8 + dt) * 4, 4), vr(vP + s * 4, 4), c))
e("v_lshlrev_b32 v5, 9, v4")
e("v_lshl_add_u32 v5, v3, 4, v5")
e("v_add_u32 v5, s44, v5")
e("s_lshl_b32 s45, s3, 5")
e("v_lshlrev_b32 v6, 3, v2")
e("v_add_u32 v6, s45, v6")
e("v_add_u32 v6, %d, v6" % L_MW)
e("v_cmp_gt_u32 vcc, 4, v4")
e("s_nop 7")
e("s_and_saveexec_b64 s[48:49], vcc")
for dt in range(8):
    e("ds_write_b128 v5, %s offset:%d" % (vr(vO + dt * 4, 4), dt * 64))
e("v_cmp_gt_u32 vcc, 4, v2")
e("s_nop 1")
e("s_and_b64 exec, exec, vcc")
e("ds_write_b64 v6, %s" % vr(vM, 2))
e("s_mov_b64 exec, s[48:49]")
e("s_waitcnt lgkmcnt(0)")
e("s_barrier")
e("s_lshl_b32 s45, s3, 9")
e("v_lshlrev_b32 v5, 3, v2")
e("v_add_u32 v5, s45, v5")
e("s_lshl_b32 s45, s3, 3")
e("s_add_u32 s45, s45, %d" % L_MW)
e("v_mov_b32 v6, s45")
for k in range(4):
    e("ds_read_b64 %s, v5 offset:%d" % (vr(vFrag + 2 * k, 2), k * 16384))
    e("ds_read_b64 %s, v6 offset:%d" % (vr(vFrag + 8 + 2 * k, 2), k * 32))
e("s_waitcnt lgkmcnt(0)")
m = [vFrag + 8 + 2 * k for k in range(4)]
e("v_max3_f32 v%d, v%d, v%d, v%d" % (vM, m[0], m[1], m[2]))
e("v_max_f32 v%d, v%d, v%d" % (vM, vM, m[3]))
for k in range(4):
    e("v_sub_f32 v%d, v%d, v%d" % (m[k], m[k], vM))
    e("v_mul_f32 v%d, s47, v%d" % (m[k], m[k]))
    e("v_exp_f32 v%d, v%d" % (m[k], m[k]))
e("s_nop 0")
G = vT
e("v_mul_f32 v%d, v%d, v%d" % (G, m[0], vFrag))
e("v_mul_f32 v%d, v%d, v%d" % (G + 1, m[0], vFrag + 1))
e("v_mul_f32 v%d, v%d, v%d" % (G + 5, m[0], m[0] + 1))
for k in range(1, 4):
    e("v_fmac_f32 v%d, v%d, v%d" % (G, m[k], vFrag + 2 * k))
    e("v_fmac_f32 v%d, v%d, v%d" % (G + 1, m[k], vFrag + 2 * k + 1))
    e("v_fmac_f32 v%d, v%d, v%d" % (G + 5, m[k], m[k] + 1))
e("v_mov_b32 v%d, v%d" % (G + 2, vNon))
e("v_mov_b32 v%d, v%d" % (G + 3, vNon + 1))
e("v_mov_b32 v%d, v%d" % (G + 4, vM))
e("v_mov_b32 v%d, v%d" % (G + 6, vNon))
e("v_mov_b32 v%d, v%d" % (G + 7, vNon + 1))
e("s_lshl_b32 s6, s4, 2")
e("s_add_u32 s6, s6, s3")
e("s_lshl_b32 s7, s6, 14")
e("s_lshl_b32 s8, s5, 7")
e("s_add_u32 s7, s7, s8")
e("s_add_u32 s7, s7, %d" % W_OP)
e("v_lshrrev_b32 v5, 3, v2")
e("v_and_b32 v6, 7, v2")
e("v_lshlrev_b32 v5, 11, v5")
e("v_lshl_add_u32 v5, v6, 4, v5")
e("v_add_u32 v5, s7, v5")
e("global_store_dwordx4 v5, %s, s[38:39] sc1" % vr(G, 4))
e("s_lshl_b32 s7, s6, 4")
e("s_add_u32 s7, s7, s5")
e("s_lshl_b32 s7, s7, 4")
e("s_add_u32 s7, s7, %d" % W_ML)
e("v_mov_b32 v6, s7")
e("v_cmp_eq_u32 vcc, 0, v2")
e("s_nop 1")
e("s_and_saveexec_b64 s[48:49], vcc")
e("global_store_dwordx4 v6, %s, s[38:39] sc1" % vr(G + 4, 4))
e("s_mov_b64 exec, s[48:49]")
e("s_endpgm")

lab("L_comm")
vX = 8
vXN = 16
vWq = 32
vGu = 48
vWo = 64
vWd = 80
aQ = 88
aG = 104
vXr = 120
vXo = 136
vTT = 140
vG4 = 164
vA = 180

e("s_sub_u32 s3, s3, 4")
e("v_and_b32 v3, 255, v0")
e("s_or_b32 s6, s2, s3")
e("s_cmp_lg_u32 s6, 0")
e("s_cbranch_scc1 L_nononce")
e("s_memrealtime s[6:7]")
e("s_waitcnt lgkmcnt(0)")
e("s_or_b32 s6, s6, 1")
e("v_mov_b32 v4, s6")
e("v_mov_b32 v5, s7")
e("v_mov_b32 v6, 0")
e("global_store_dwordx2 v6, v[4:5], s[36:37] sc1")
lab("L_nononce")
e("v_lshlrev_b32 v4, 4, v2")
e("global_load_dwordx4 %s, v4, s[16:17]" % vr(vX, 4))
e("global_load_dwordx4 %s, v4, s[16:17] offset:1024" % vr(vX + 4, 4))
e("s_and_b32 s6, s2, 7")
e("s_lshr_b32 s7, s2, 7")
e("s_lshl_b32 s7, s7, 1")
e("s_bfe_u32 s8, s2, 0x10003")
e("s_or_b32 s7, s7, s8")
e("s_and_b32 s8, s4, 7")
e("s_lshl_b32 s9, s7, 20")
e("s_lshl_b32 s10, s8, 10")
e("s_add_u32 s9, s9, s10")
e("s_lshl_b32 s10, s6, 7")
e("s_add_u32 s9, s9, s10")
e("s_add_u32 s40, s22, s9")
e("s_addc_u32 s41, s23, 0")
e("v_lshrrev_b32 v5, 3, v3")
e("v_and_b32 v6, 7, v3")
e("v_lshlrev_b32 v7, 13, v5")
e("v_lshl_add_u32 v7, v6, 4, v7")
for j in range(4):
    e("global_load_dwordx4 %s, v7, s[40:41]" % vr(vWq + 4 * j, 4))
    if j < 3:
        e("v_add_u32 v7, 0x40000, v7")
e("s_and_b32 s11, s2, 3")
e("s_bfe_u32 s12, s2, 0x10002")
e("s_lshr_b32 s13, s2, 3")
e("s_cmp_ge_u32 s2, 224")
e("s_cbranch_scc1 L_nogu0")
e("s_cmp_eq_u32 s12, 0")
e("s_cselect_b32 s42, s28, s30")
e("s_cselect_b32 s43, s29, s31")
e("s_mul_i32 s9, s11, %d" % (128 * 3584))
e("s_lshl_b32 s10, s13, 7")
e("s_add_u32 s9, s9, s10")
e("s_add_u32 s42, s42, s9")
e("s_addc_u32 s43, s43, 0")
e("s_movk_i32 s9, 3584")
e("v_mul_lo_u32 v7, v5, s9")
e("v_lshl_add_u32 v7, v6, 4, v7")
for j in range(4):
    e("global_load_dwordx4 %s, v7, s[42:43]" % vr(vGu + 4 * j, 4))
    if j < 3:
        e("v_add_u32 v7, %d, v7" % (32 * 3584))
e("s_lshl_b32 s9, s2, 3")
e("s_lshl_b32 s10, s3, 1")
e("s_add_u32 s9, s9, s10")
e("s_lshl_b32 s9, s9, 10")
e("s_add_u32 s44, s32, s9")
e("s_addc_u32 s45, s33, 0")
e("global_load_dwordx4 %s, v4, s[44:45]" % vr(vWd, 4))
e("global_load_dwordx4 %s, v4, s[44:45] offset:1024" % vr(vWd + 4, 4))
lab("L_nogu0")
e("s_lshl_b32 s9, s2, 4")
e("s_lshl_b32 s10, s3, 2")
e("s_add_u32 s9, s9, s10")
e("s_lshl_b32 s9, s9, 10")
e("s_add_u32 s46, s24, s9")
e("s_addc_u32 s47, s25, 0")
for j in range(4):
    e("global_load_dwordx4 %s, v4, s[46:47] offset:%d" % (vr(vWo + 4 * j, 4), j * 1024))
e("v_and_b32 v7, 3, v2")
e("s_lshl_b32 s9, s2, 2")
e("v_add_u32 v7, s9, v7")
e("v_lshlrev_b32 v7, 1, v7")
e("global_load_ushort v%d, v7, s[16:17]" % vXo)
e("v_mov_b32 v%d, v7" % (vA + 7))

e("s_cmp_ge_u32 s2, 224")
e("s_cbranch_scc1 L_w9")
e("s_waitcnt vmcnt(15)")
e("s_branch L_wd")
lab("L_w9")
e("s_waitcnt vmcnt(9)")
lab("L_wd")
for b in range(2):
    for d in range(4):
        src = vX + 4 * b + d
        e("v_lshlrev_b32 v%d, 16, v%d" % (vXN + (2 * d) * 2 + b, src))
        e("v_and_b32 v%d, 0xffff0000, v%d" % (vXN + (2 * d + 1) * 2 + b, src))
for b in range(2):
    s_ = vTT + b
    e("v_add_f32 v%d, v%d, v%d" % (s_, vXN + b, vXN + 2 + b))
    for i in range(2, 8):
        e("v_add_f32 v%d, v%d, v%d" % (s_, s_, vXN + 2 * i + b))
for b in range(2):
    red16("v_add_f32", vTT + b)
    red_rows("v_add_f32", vTT + b, vTT + 8)
    e("v_mul_f32 v%d, %s, v%d" % (vTT + b, f2h(1.0 / 512), vTT + b))
for b in range(2):
    s_ = vTT + 2 + b
    for i in range(8):
        e("v_sub_f32 v%d, v%d, v%d" % (vTT + 8, vXN + 2 * i + b, vTT + b))
        if i == 0:
            e("v_mul_f32 v%d, v%d, v%d" % (s_, vTT + 8, vTT + 8))
        else:
            e("v_fmac_f32 v%d, v%d, v%d" % (s_, vTT + 8, vTT + 8))
for b in range(2):
    red16("v_add_f32", vTT + 2 + b)
    red_rows("v_add_f32", vTT + 2 + b, vTT + 8)
    e("v_mul_f32 v%d, %s, v%d" % (vTT + 2 + b, f2h(1.0 / 512), vTT + 2 + b))
    rnd_bf16(vTT + b, vTT + b)
    rnd_bf16(vTT + 2 + b, vTT + 2 + b)
    e("v_add_f32 v%d, %s, v%d" % (vTT + 2 + b, EPS, vTT + 2 + b))
    rnd_bf16(vTT + 2 + b, vTT + 2 + b)
    e("v_sqrt_f32 v%d, v%d" % (vTT + 2 + b, vTT + 2 + b))
    e("s_nop 0")
    rnd_bf16(vTT + 2 + b, vTT + 2 + b)
    e("v_rcp_f32 v%d, v%d" % (vTT + 4 + b, vTT + 2 + b))
    e("s_nop 0")
for b in range(2):
    for i in range(8):
        x = vXN + 2 * i + b
        e("v_sub_f32 v%d, v%d, v%d" % (x, x, vTT + b))
        rnd_bf16(x, x)
        e("v_mul_f32 v%d, v%d, v%d" % (vTT + 8, x, vTT + 4 + b))
        e("v_fma_f32 v%d, -v%d, v%d, v%d" % (vTT + 9, vTT + 8, vTT + 2 + b, x))
        e("v_fma_f32 v%d, v%d, v%d, v%d" % (x, vTT + 9, vTT + 4 + b, vTT + 8))
        rnd_bf16(x, x)
e("v_lshlrev_b32 v7, 6, v2")
e("v_add_u32 v7, %d, v7" % L_XN)
for k in range(4):
    e("ds_write_b128 v7, %s offset:%d" % (vr(vXN + 4 * k, 4), 16 * k))
e("s_waitcnt lgkmcnt(0)")
e("s_lshl_b32 s9, s7, 10")
e("s_add_u32 s9, s9, %d" % L_XN)
e("v_lshlrev_b32 v7, 3, v5")
e("v_add_u32 v6, s9, v7")
for j in range(4):
    e("ds_read_b64 %s, v6 offset:%d" % (vr(vXr + 2 * j, 2), j * 256))
e("s_lshl_b32 s9, s11, 10")
e("s_add_u32 s9, s9, %d" % L_XN)
e("v_add_u32 v6, s9, v7")
for j in range(4):
    e("ds_read_b64 %s, v6 offset:%d" % (vr(vXr + 8 + 2 * j, 2), j * 256))
e("s_waitcnt vmcnt(0) lgkmcnt(0)")


def tile_fma(acc, wv, xr):
    for j in range(4):
        for d in range(4):
            src = wv + 4 * j + d
            e("v_lshlrev_b32 v%d, 16, v%d" % (vTT, src))
            e("v_and_b32 v%d, 0xffff0000, v%d" % (vTT + 1, src))
            for b in range(2):
                for h in range(2):
                    a_ = acc + b * 8 + 2 * d + h
                    if j == 0:
                        e("v_mul_f32 v%d, v%d, v%d" % (a_, xr + 2 * j + b, vTT + h))
                    else:
                        e("v_fmac_f32 v%d, v%d, v%d" % (a_, xr + 2 * j + b, vTT + h))


tile_fma(aQ, vWq, vXr)
e("s_cmp_ge_u32 s2, 224")
e("s_cbranch_scc1 L_nogu1")
tile_fma(aG, vGu, vXr + 8)
lab("L_nogu1")
e("s_nop 1")
for k in range(16):
    e("v_add_f32_dpp v%d, v%d, v%d row_shr:8 row_mask:0xf bank_mask:0xf bound_ctrl:0" % (aQ + k, aQ + k, aQ + k))
for k in range(16):
    e("v_add_f32_dpp v%d, v%d, v%d row_shr:8 row_mask:0xf bank_mask:0xf bound_ctrl:0" % (aG + k, aG + k, aG + k))
e("v_lshrrev_b32 v6, 4, v2")
e("s_lshl_b32 s9, s3, 2")
e("v_add_u32 v6, s9, v6")
e("v_lshlrev_b32 v6, 9, v6")
e("v_and_b32 v7, 7, v2")
e("v_lshl_add_u32 v6, v7, 5, v6")
e("v_add_u32 v6, %d, v6" % L_RED)
e("v_and_b32 v7, 8, v2")
e("v_cmp_ne_u32 vcc, 0, v7")
e("s_nop 1")
e("s_and_saveexec_b64 s[48:49], vcc")
for tl, acc in ((0, aQ), (1, aG)):
    for b in range(2):
        for h in range(2):
            e("ds_write_b128 v6, %s offset:%d" % (vr(acc + b * 8 + 4 * h, 4), tl * 8192 + b * 256 + h * 16))
e("s_mov_b64 exec, s[48:49]")
e("v_mov_b32 v7, 0")
e("s_mov_b32 s60, 0")
lab("L_npoll")
e("global_load_dwordx2 v[4:5], v7, s[36:37] sc1")
e("s_waitcnt vmcnt(0)")
e("v_readfirstlane_b32 s50, v4")
e("v_readfirstlane_b32 s51, v5")
e("s_nop 3")
e("s_cmp_lg_u32 s50, 0")
e("s_cbranch_scc1 L_npolld")
e("s_add_u32 s60, s60, 1")
e("s_cmp_lt_u32 s60, %d" % SPIN_LIMIT)
e("s_sleep 1")
e("s_cbranch_scc1 L_npoll")
lab("L_npolld")
e("v_mov_b32 v7, %d" % L_NONCE)
e("ds_write_b64 v7, v[4:5]")
e("s_waitcnt lgkmcnt(0)")
e("s_barrier")
e("s_cmp_eq_u32 s3, 0")
e("s_cbranch_scc0 L_notq")
e("v_lshlrev_b32 v6, 3, v2")
e("v_add_u32 v6, %d, v6" % L_RED)
for gi in range(16):
    e("ds_read_b64 %s, v6 offset:%d" % (vr(vWq + 2 * gi, 2), gi * 512))
e("s_waitcnt lgkmcnt(0)")
e("v_add_f32 v%d, v%d, v%d" % (vG4, vWq, vWq + 2))
e("v_add_f32 v%d, v%d, v%d" % (vG4 + 1, vWq + 1, vWq + 3))
for gi in range(2, 16):
    e("v_add_f32 v%d, v%d, v%d" % (vG4, vG4, vWq + 2 * gi))
    e("v_add_f32 v%d, v%d, v%d" % (vG4 + 1, vG4 + 1, vWq + 2 * gi + 1))
e("v_mov_b32 v%d, s50" % (vG4 + 2))
e("v_mov_b32 v%d, s51" % (vG4 + 3))
e("s_lshl_b32 s9, s8, 2")
e("s_add_u32 s9, s9, s7")
e("s_lshl_b32 s9, s9, 13")
e("s_lshl_b32 s10, s6, 9")
e("s_add_u32 s9, s9, s10")
e("s_add_u32 s9, s9, %d" % W_QP)
e("v_lshrrev_b32 v6, 5, v2")
e("v_and_b32 v7, 31, v2")
e("v_lshlrev_b32 v6, 12, v6")
e("v_lshl_add_u32 v6, v7, 4, v6")
e("v_add_u32 v6, s9, v6")
e("global_store_dwordx4 v6, %s, s[38:39] sc1" % vr(vG4, 4))
e("s_branch L_pubdone")
lab("L_notq")
e("s_cmp_eq_u32 s3, 1")
e("s_cbranch_scc0 L_pubdone")
e("s_cmp_ge_u32 s2, 224")
e("s_cbranch_scc1 L_pubdone")
e("v_lshlrev_b32 v6, 2, v2")
e("v_add_u32 v6, %d, v6" % (L_RED + 8192))
for gi in range(16):
    e("ds_read_b32 v%d, v6 offset:%d" % (vWq + 2 * gi, gi * 512))
    e("ds_read_b32 v%d, v6 offset:%d" % (vWq + 2 * gi + 1, gi * 512 + 256))
e("s_waitcnt lgkmcnt(0)")
e("v_add_f32 v%d, v%d, v%d" % (vG4, vWq, vWq + 2))
e("v_add_f32 v%d, v%d, v%d" % (vG4 + 1, vWq + 1, vWq + 3))
for gi in range(2, 16):
    e("v_add_f32 v%d, v%d, v%d" % (vG4, vG4, vWq + 2 * gi))
    e("v_add_f32 v%d, v%d, v%d" % (vG4 + 1, vG4 + 1, vWq + 2 * gi + 1))
e("v_mov_b32 v%d, s50" % (vG4 + 2))
e("v_mov_b32 v%d, s51" % (vG4 + 3))
e("s_lshl_b32 s9, s12, 2")
e("s_add_u32 s9, s9, s11")
e("s_mul_i32 s9, s9, 1792")
e("s_lshl_b32 s10, s13, 6")
e("s_add_u32 s9, s9, s10")
e("s_lshl_b32 s9, s9, 4")
e("s_add_u32 s9, s9, %d" % W_GU)
e("v_lshlrev_b32 v6, 4, v2")
e("v_add_u32 v6, s9, v6")
e("global_store_dwordx4 v6, %s, s[38:39] sc1" % vr(vG4, 4))
lab("L_pubdone")
e("s_lshl_b32 s9, s8, 15")
e("s_lshr_b32 s10, s2, 7")
e("s_lshl_b32 s10, s10, 12")
e("s_add_u32 s9, s9, s10")
e("s_add_u32 s9, s9, %d" % W_QP)
e("v_lshlrev_b32 v6, 4, v3")
e("v_add_u32 v6, s9, v6")
e("v_add_u32 v7, 0x4000, v6")
e("v_add_u32 v%d, 0x2000, v6" % vA)
e("v_add_u32 v%d, 0x6000, v6" % (vA + 1))
poll(["global_load_dwordx4 %s, v6, s[38:39] sc1" % vr(vG4, 4),
      "global_load_dwordx4 %s, v%d, s[38:39] sc1" % (vr(vG4 + 4, 4), vA),
      "global_load_dwordx4 %s, v7, s[38:39] sc1" % vr(vG4 + 8, 4),
      "global_load_dwordx4 %s, v%d, s[38:39] sc1" % (vr(vG4 + 12, 4), vA + 1)],
     [vG4, vG4 + 4, vG4 + 8, vG4 + 12], vTT)
e("v_add_f32 v%d, v%d, v%d" % (vG4, vG4, vG4 + 4))
e("v_add_f32 v%d, v%d, v%d" % (vG4 + 8, vG4 + 8, vG4 + 12))
e("v_add_f32 v%d, v%d, v%d" % (vG4 + 1, vG4 + 1, vG4 + 5))
e("v_add_f32 v%d, v%d, v%d" % (vG4 + 9, vG4 + 9, vG4 + 13))
e("v_add_f32 v%d, v%d, v%d" % (vG4, vG4, vG4 + 8))
e("v_add_f32 v%d, v%d, v%d" % (vG4 + 1, vG4 + 1, vG4 + 9))
e("v_cvt_pk_bf16_f32 v%d, v%d, v%d" % (vG4, vG4, vG4 + 1))
e("v_lshlrev_b32 v6, 2, v3")
e("v_add_u32 v6, %d, v6" % L_Q)
e("ds_write_b32 v6, v%d" % vG4)
e("s_waitcnt lgkmcnt(0)")
e("s_barrier")
for k in range(16):
    e("v_mov_b32 v%d, 0" % (aG + k))
e("s_cmp_ge_u32 s2, 224")
e("s_cbranch_scc1 L_noffn")
e("v_and_b32 v5, 3, v2")
e("v_bfe_u32 v6, v2, 3, 1")
e("v_lshl_add_u32 v5, v6, 2, v5")
e("s_movk_i32 s9, 1792")
e("v_mul_lo_u32 v5, v5, s9")
e("v_bfe_u32 v6, v2, 2, 1")
e("v_add_u32 v5, v5, v6")
e("s_lshl_b32 s9, s2, 3")
e("s_lshl_b32 s10, s3, 1")
e("s_add_u32 s9, s9, s10")
e("v_add_u32 v5, s9, v5")
e("v_lshlrev_b32 v5, 4, v5")
e("v_add_u32 v5, %d, v5" % W_GU)
poll(["global_load_dwordx4 %s, v5, s[38:39] sc1" % vr(vG4, 4)], [vG4], vTT)
for k in range(2):
    e("s_nop 1")
    e("v_add_f32_dpp v%d, v%d, v%d quad_perm:[1,0,3,2] row_mask:0xf bank_mask:0xf" % (vG4 + k, vG4 + k, vG4 + k))
    e("s_nop 1")
    e("v_add_f32_dpp v%d, v%d, v%d quad_perm:[2,3,0,1] row_mask:0xf bank_mask:0xf" % (vG4 + k, vG4 + k, vG4 + k))
    rnd_bf16(vG4 + k, vG4 + k)
e("s_mov_b32 s9, %s" % LOG2E)
for k in range(2):
    e("s_nop 1")
    e("v_mov_b32_dpp v%d, v%d row_ror:8 row_mask:0xf bank_mask:0xf" % (vG4 + 4 + k, vG4 + k))
    e("v_mul_f32 v%d, -v%d, s9" % (vTT, vG4 + k))
    e("v_exp_f32 v%d, v%d" % (vTT, vTT))
    e("s_nop 0")
    e("v_add_f32 v%d, 1.0, v%d" % (vTT, vTT))
    e("v_rcp_f32 v%d, v%d" % (vTT, vTT))
    e("s_nop 0")
    e("v_mul_f32 v%d, v%d, v%d" % (vTT, vTT, vG4 + k))
    rnd_bf16(vTT, vTT)
    e("v_mul_f32 v%d, v%d, v%d" % (vTT, vTT, vG4 + 4 + k))
    rnd_bf16(vG4 + 8 + k, vTT)
e("s_nop 1")
e("v_readlane_b32 s52, v%d, 0" % (vG4 + 8))
e("v_readlane_b32 s53, v%d, 0" % (vG4 + 9))
e("v_readlane_b32 s54, v%d, 4" % (vG4 + 8))
e("v_readlane_b32 s55, v%d, 4" % (vG4 + 9))
e("s_nop 1")
for j in range(2):
    for d in range(4):
        src = vWd + 4 * j + d
        e("v_lshlrev_b32 v%d, 16, v%d" % (vTT, src))
        e("v_and_b32 v%d, 0xffff0000, v%d" % (vTT + 1, src))
        for b in range(2):
            for h in range(2):
                e("v_fmac_f32 v%d, s%d, v%d" % (aG + b * 8 + 2 * d + h, 52 + 2 * j + b, vTT + h))
lab("L_noffn")
e("v_lshrrev_b32 v5, 5, v2")
e("v_and_b32 v6, 15, v2")
e("v_bfe_u32 v7, v2, 4, 1")
e("v_lshlrev_b32 v%d, 19, v5" % vA)
e("v_lshl_add_u32 v%d, v6, 7, v%d" % (vA, vA))
e("v_lshl_add_u32 v%d, v7, 4, v%d" % (vA, vA))
e("s_lshl_b32 s9, s2, 11")
e("s_lshl_b32 s10, s3, 5")
e("s_add_u32 s9, s9, s10")
e("s_add_u32 s9, s9, %d" % W_OP)
e("v_add_u32 v%d, s9, v%d" % (vA, vA))
e("v_lshlrev_b32 v%d, 13, v5" % (vA + 1))
e("v_lshl_add_u32 v%d, v6, 4, v%d" % (vA + 1, vA + 1))
e("s_lshr_b32 s9, s2, 3")
e("s_lshl_b32 s9, s9, 8")
e("s_add_u32 s9, s9, %d" % W_ML)
e("v_add_u32 v%d, s9, v%d" % (vA + 1, vA + 1))
e("s_mov_b32 s47, %s" % LOG2E)
e("s_barrier")
poll(["global_load_dwordx4 %s, v%d, s[38:39] sc1" % (vr(vG4, 4), vA),
      "global_load_dwordx4 %s, v%d, s[38:39] sc1" % (vr(vG4 + 4, 4), vA + 1)],
     [vG4, vG4 + 4], vTT)
e("v_mov_b32 v%d, v%d" % (vTT + 2, vG4 + 4))
red16("v_max_f32", vTT + 2)
e("v_sub_f32 v%d, v%d, v%d" % (vTT + 3, vG4 + 4, vTT + 2))
e("v_mul_f32 v%d, s47, v%d" % (vTT + 3, vTT + 3))
e("v_exp_f32 v%d, v%d" % (vTT + 3, vTT + 3))
e("s_nop 0")
e("v_mul_f32 v%d, v%d, v%d" % (vG4, vG4, vTT + 3))
e("v_mul_f32 v%d, v%d, v%d" % (vG4 + 1, vG4 + 1, vTT + 3))
e("v_mul_f32 v%d, v%d, v%d" % (vG4 + 5, vG4 + 5, vTT + 3))
red16("v_add_f32", vG4)
red16("v_add_f32", vG4 + 1)
red16("v_add_f32", vG4 + 5)
e("v_rcp_f32 v%d, v%d" % (vTT + 3, vG4 + 5))
e("s_nop 0")
e("v_mul_f32 v%d, v%d, v%d" % (vG4, vG4, vTT + 3))
e("v_mul_f32 v%d, v%d, v%d" % (vG4 + 1, vG4 + 1, vTT + 3))
rnd_bf16(vG4, vG4)
rnd_bf16(vG4 + 1, vG4 + 1)
e("s_nop 1")
for b in range(2):
    for dpl in range(2):
        for k in range(2):
            e("v_readlane_b32 s%d, v%d, %d" % (52 + (2 * dpl + k) * 2 + b, vG4 + k, b * 32 + dpl * 16))
e("s_nop 1")
for j in range(4):
    for d in range(4):
        src = vWo + 4 * j + d
        e("v_lshlrev_b32 v%d, 16, v%d" % (vTT, src))
        e("v_and_b32 v%d, 0xffff0000, v%d" % (vTT + 1, src))
        for b in range(2):
            for h in range(2):
                a_ = aQ + b * 8 + 2 * d + h
                if j == 0:
                    e("v_mul_f32 v%d, s%d, v%d" % (a_, 52 + 2 * j + b, vTT + h))
                else:
                    e("v_fmac_f32 v%d, s%d, v%d" % (a_, 52 + 2 * j + b, vTT + h))
e("s_lshl_b32 s9, s3, 13")
e("s_add_u32 s9, s9, %d" % L_V)
e("v_lshlrev_b32 v6, 5, v2")
e("v_add_u32 v6, s9, v6")
for ab, acc in ((0, aQ), (1, aG)):
    for b in range(2):
        for h in range(2):
            e("ds_write_b128 v6, %s offset:%d" % (vr(acc + b * 8 + 4 * h, 4), ab * 4096 + b * 2048 + h * 16))
e("s_waitcnt lgkmcnt(0)")
e("s_barrier")
e("v_lshlrev_b32 v6, 4, v3")
e("v_add_u32 v6, %d, v6" % L_V)
for cc in range(4):
    e("ds_read_b128 %s, v6 offset:%d" % (vr(vWq + 4 * cc, 4), cc * 8192))
    e("ds_read_b128 %s, v6 offset:%d" % (vr(vGu + 4 * cc, 4), cc * 8192 + 4096))
e("s_waitcnt lgkmcnt(0)")
for j in range(4):
    g = vG4 + 4 * j
    e("v_add_f32 v%d, v%d, v%d" % (g, vWq + j, vWq + 4 + j))
    e("v_add_f32 v%d, v%d, v%d" % (vTT, vWq + 8 + j, vWq + 12 + j))
    e("v_add_f32 v%d, v%d, v%d" % (g, g, vTT))
    e("v_add_f32 v%d, v%d, v%d" % (g + 1, vGu + j, vGu + 4 + j))
    e("v_add_f32 v%d, v%d, v%d" % (vTT, vGu + 8 + j, vGu + 12 + j))
    e("v_add_f32 v%d, v%d, v%d" % (g + 1, g + 1, vTT))
    e("v_mov_b32 v%d, s50" % (g + 2))
    e("v_mov_b32 v%d, s51" % (g + 3))
e("s_lshl_b32 s9, s2, 14")
e("s_add_u32 s9, s9, %d" % W_FP)
e("v_lshlrev_b32 v6, 6, v3")
e("v_add_u32 v6, s9, v6")
for j in range(4):
    e("global_store_dwordx4 v6, %s, s[38:39] offset:%d sc1" % (vr(vG4 + 4 * j, 4), 16 * j))
e("v_lshrrev_b32 v5, 2, v3")
e("v_and_b32 v7, 3, v3")
e("v_lshlrev_b32 v5, 14, v5")
e("v_lshl_add_u32 v5, v7, 4, v5")
e("s_lshl_b32 s9, s2, 6")
e("s_add_u32 s9, s9, %d" % W_FP)
e("v_add_u32 v%d, s9, v5" % vA)
for k in range(1, 4):
    e("v_add_u32 v%d, 0x100000, v%d" % (vA + k, vA + k - 1))
e("s_nop 1")
poll(["global_load_dwordx4 %s, v%d, s[38:39] sc1" % (vr(vWq + 4 * k, 4), vA + k) for k in range(4)],
     [vWq + 4 * k for k in range(4)], vTT)
e("v_add_f32 v%d, v%d, v%d" % (vG4, vWq, vWq + 4))
e("v_add_f32 v%d, v%d, v%d" % (vTT, vWq + 8, vWq + 12))
e("v_add_f32 v%d, v%d, v%d" % (vG4, vG4, vTT))
e("v_add_f32 v%d, v%d, v%d" % (vG4 + 1, vWq + 1, vWq + 5))
e("v_add_f32 v%d, v%d, v%d" % (vTT, vWq + 9, vWq + 13))
e("v_add_f32 v%d, v%d, v%d" % (vG4 + 1, vG4 + 1, vTT))
for k in range(2):
    for n in (8, 4):
        e("s_nop 1")
        e("v_add_f32_dpp v%d, v%d, v%d row_ror:%d row_mask:0xf bank_mask:0xf" % (vG4 + k, vG4 + k, vG4 + k, n))
    red_rows("v_add_f32", vG4 + k, vTT)
e("s_lshl_b32 s9, s3, 5")
e("s_add_u32 s9, s9, %d" % L_FIN)
e("v_lshlrev_b32 v6, 3, v2")
e("v_add_u32 v6, s9, v6")
e("v_cmp_gt_u32 vcc, 4, v2")
e("s_nop 1")
e("s_and_saveexec_b64 s[48:49], vcc")
e("ds_write_b64 v6, %s" % vr(vG4, 2))
e("s_mov_b64 exec, s[48:49]")
e("s_waitcnt lgkmcnt(0)")
e("s_barrier")
e("s_cmp_eq_u32 s3, 0")
e("s_cbranch_scc0 L_end")
e("v_and_b32 v6, 3, v2")
e("v_lshlrev_b32 v6, 3, v6")
e("v_add_u32 v6, %d, v6" % L_FIN)
for cc in range(4):
    e("ds_read_b64 %s, v6 offset:%d" % (vr(vWq + 2 * cc, 2), cc * 32))
e("s_waitcnt lgkmcnt(0)")
e("v_add_f32 v%d, v%d, v%d" % (vG4, vWq, vWq + 2))
e("v_add_f32 v%d, v%d, v%d" % (vTT, vWq + 4, vWq + 6))
e("v_add_f32 v%d, v%d, v%d" % (vG4, vG4, vTT))
e("v_add_f32 v%d, v%d, v%d" % (vG4 + 1, vWq + 1, vWq + 3))
e("v_add_f32 v%d, v%d, v%d" % (vTT, vWq + 5, vWq + 7))
e("v_add_f32 v%d, v%d, v%d" % (vG4 + 1, vG4 + 1, vTT))
rnd_bf16(vG4, vG4)
rnd_bf16(vG4 + 1, vG4 + 1)
e("v_lshlrev_b32 v%d, 16, v%d" % (vXo, vXo))
e("v_add_f32 v%d, v%d, v%d" % (vG4, vXo, vG4))
rnd_bf16(vG4, vG4)
e("v_add_f32 v%d, v%d, v%d" % (vG4, vG4, vG4 + 1))
e("v_cvt_pk_bf16_f32 v%d, v%d, v%d" % (vG4, vG4, vG4))
e("v_cmp_gt_u32 vcc, 4, v2")
e("s_nop 1")
e("s_and_saveexec_b64 s[48:49], vcc")
e("global_store_short v%d, v%d, s[34:35]" % (vA + 7, vG4))
lab("L_end")
e("s_endpgm")

out.append(""".section .rodata,"a"
.p2align 6
.amdhsa_kernel %s_kernel
  .amdhsa_next_free_vgpr 192
  .amdhsa_next_free_sgpr 96
  .amdhsa_accum_offset 192
  .amdhsa_group_segment_fixed_size 0
  .amdhsa_kernarg_size 96
  .amdhsa_user_sgpr_count 2
  .amdhsa_user_sgpr_kernarg_segment_ptr 1
  .amdhsa_system_sgpr_workgroup_id_x 1
.end_amdhsa_kernel""" % NAME)

open(sys.argv[1] if len(sys.argv) > 1 else "cdna_kernels/%s.s" % NAME, "w").write("\n".join(out) + "\n")
```

```python
import struct
import sys

NAME = "parallel_sum__sliding_block_cached__swiglu_ffn__decode"
STAMP = len(sys.argv) > 2 and sys.argv[2] == "stamp"
OPT = dict(a.split("=") for a in sys.argv[3:])


def f2h(x):
    return "0x%08x" % struct.unpack("<I", struct.pack("<f", x))[0]


LOG2E = f2h(1.4426950408889634)
SCALE = f2h(128 ** -0.5)
EPS = f2h(1e-5)

L_K = 0
L_V = 65536
L_XN = 131072
L_RED = 135168
L_Q = 151552
L_MW = 152576
L_NONCE = 152832
L_FIN = 152848
L_FLG = 152976
L_HH = 153024
L_OC = L_XN
LDS_BYTES = 153600
F_RED, F_Q, F_OW, F_R2, F_H, F_NON, F_PUB, F_OC, F_AP = range(9)

W_QP = 0x0
W_GU = 0x40000
W_ML = 0x80000
W_OP = 0x100000
W_FP = 0x200000
FPS = 2048 + 64
W_ST = 0x1000000

SPIN_LIMIT = 200000
TH = int(OPT.get("TH", 2))
VQ = int(OPT.get("VQ", 3))
NV = 128

out = []
_pl = [0]


def e(s=""):
    out.append("    " + s)


def lab(s):
    out.append(s + ":")


def vr(b, n):
    return "v[%d:%d]" % (b, b + n - 1)


def stamp(idx):
    if not STAMP:
        return
    e("s_memrealtime s[70:71]")
    e("s_waitcnt lgkmcnt(0)")
    e("s_mov_b32 s%d, s70" % (72 + idx))


def stamp_flush(n, base):
    if not STAMP:
        return
    for i in range(n):
        e("v_mov_b32 v%d, s%d" % (base + i, 72 + i))
    for i in range(n, 16):
        e("v_mov_b32 v%d, 0" % (base + i))
    a = base + 16
    e("v_lshrrev_b32 v%d, 6, v0" % a)
    e("s_lshl_b32 s70, s2, 4")
    e("v_add_u32 v%d, s70, v%d" % (a, a))
    e("v_lshlrev_b32 v%d, 6, v%d" % (a, a))
    e("v_add_u32 v%d, %d, v%d" % (a, W_ST, a))
    e("s_mov_b64 exec, 1")
    for k in range(4):
        e("global_store_dwordx4 v%d, %s, s[38:39] offset:%d" % (a, vr(base + 4 * k, 4), 16 * k))
    e("s_mov_b64 exec, -1")


def rnd_bf16(dst, src):
    e("v_cvt_pk_bf16_f32 v%d, v%d, v%d" % (dst, src, src))
    e("v_lshlrev_b32 v%d, 16, v%d" % (dst, dst))


def red16(op, v):
    for n in (8, 4, 2, 1):
        e("s_nop 1")
        e("%s_dpp v%d, v%d, v%d row_ror:%d row_mask:0xf bank_mask:0xf" % (op, v, v, v, n))


def red_half(op, v, t):
    e("v_mov_b32 v%d, v%d" % (t, v))
    e("s_nop 1")
    e("v_permlane32_swap_b32 v%d, v%d" % (v, t))
    e("s_nop 1")
    e("%s v%d, v%d, v%d" % (op, v, v, t))


def red_rows(op, v, t):
    e("v_mov_b32 v%d, v%d" % (t, v))
    e("s_nop 1")
    e("v_permlane16_swap_b32 v%d, v%d" % (v, t))
    e("s_nop 1")
    e("%s v%d, v%d, v%d" % (op, v, v, t))
    red_half(op, v, t)


def tagcheck(grans, tmp):
    first = True
    for g in grans:
        if first:
            e("v_xor_b32 v%d, s50, v%d" % (tmp, g + 2))
            first = False
        else:
            e("v_xor_b32 v%d, s50, v%d" % (tmp + 1, g + 2))
            e("v_or_b32 v%d, v%d, v%d" % (tmp, tmp, tmp + 1))
        e("v_xor_b32 v%d, s51, v%d" % (tmp + 1, g + 3))
        e("v_or_b32 v%d, v%d, v%d" % (tmp, tmp, tmp + 1))
    e("v_cmp_ne_u32 vcc, 0, v%d" % tmp)
    e("s_nop 1")
    e("s_and_b64 exec, exec, vcc")


def poll(loads, grans, tmp, sleep=1):
    _pl[0] += 1
    L = "L_poll%d" % _pl[0]
    D = "L_polld%d" % _pl[0]
    e("s_mov_b32 s60, 0")
    lab(L)
    for l in loads:
        e(l)
    e("s_waitcnt vmcnt(0)")
    tagcheck(grans, tmp)
    e("s_cbranch_scc0 %s" % D)
    e("s_add_u32 s60, s60, 1")
    e("s_cmp_lt_u32 s60, %d" % SPIN_LIMIT)
    if sleep:
        e("s_sleep %d" % sleep)
    e("s_cbranch_scc1 %s" % L)
    lab(D)
    e("s_mov_b64 exec, -1")


def signal(flag, va, vb):
    e("s_waitcnt lgkmcnt(0)")
    e("v_mov_b32 v%d, %d" % (va, L_FLG + 4 * flag))
    e("v_mov_b32 v%d, 1" % vb)
    e("s_mov_b64 exec, 1")
    e("ds_add_u32 v%d, v%d" % (va, vb))
    e("s_mov_b64 exec, -1")


def wait_flag(flag, target, va, vb):
    _pl[0] += 1
    L = "L_wf%d" % _pl[0]
    e("v_mov_b32 v%d, %d" % (va, L_FLG + 4 * flag))
    lab(L)
    e("ds_read_b32 v%d, v%d" % (vb, va))
    e("s_waitcnt lgkmcnt(0)")
    e("v_readfirstlane_b32 s61, v%d" % vb)
    e("s_nop 3")
    e("s_cmp_ge_u32 s61, %d" % target)
    e("s_cbranch_scc0 %s" % L)


header = """; Kernarg layout for this problem (96 bytes, ptrs only, base s[0:1]):
;   offset   0: d_in[0] A_x  shape=(2, 1, 512) dtype=bfloat16 strides=(1024, 1024, 2) contiguous=True
;   offset   8: d_in[1] A_k_cache  shape=(2, 8, 32768, 128) dtype=bfloat16 strides=(67108864, 8388608, 256, 2) contiguous=True
;   offset  16: d_in[2] A_v_cache  shape=(2, 8, 32768, 128) dtype=bfloat16 strides=(67108864, 8388608, 256, 2) contiguous=True
;   offset  24: d_in[3] A_wq  shape=(512, 4096) dtype=bfloat16 strides=(8192, 2) contiguous=True
;   offset  32: d_in[4] A_wo  shape=(4096, 512) dtype=bfloat16 strides=(1024, 2) contiguous=True
;   offset  40: d_in[5] B_x  shape=(2, 1, 512) dtype=bfloat16 strides=(1024, 1024, 2) contiguous=True
;   offset  48: d_in[6] B_w_gate  shape=(512, 1792) dtype=bfloat16 strides=(3584, 2) contiguous=True
;   offset  56: d_in[7] B_w_up  shape=(512, 1792) dtype=bfloat16 strides=(3584, 2) contiguous=True
;   offset  64: d_in[8] B_w_down  shape=(1792, 512) dtype=bfloat16 strides=(1024, 2) contiguous=True
;   offset  72: d_out     shape=(2, 1, 512) dtype=bfloat16 (2 bytes/elem)
;   offset  80: d_debug   256 bytes
;   offset  88: d_ws      536870912 bytes workspace (unspecified values whenever your kernel or launch list starts; a list's later launches find what earlier ones wrote)
; Override launch geometry by editing the next line (default: block=256,
; grid=ceil(out_elems/256), lds=0). Harness parses it; keep it on one line.
; @launch grid=(256,1,1) block=(832,1,1) lds=%d
.amdgcn_target "amdgcn-amd-amdhsa--gfx950"
.text
.globl %s_kernel
.p2align 8
.type %s_kernel,@function
%s_kernel:""" % (LDS_BYTES, NAME, NAME, NAME)
out.append(header)

e("s_cmp_ge_u32 s2, 256")
e("s_cbranch_scc1 L_end")
e("s_load_dwordx16 s[16:31], s[0:1], 0")
e("s_load_dwordx8 s[32:39], s[0:1], 64")
e("v_lshrrev_b32 v1, 6, v0")
e("v_and_b32 v2, 63, v0")
e("s_nop 0")
e("v_readfirstlane_b32 s3, v1")
e("s_lshr_b32 s4, s2, 4")
e("s_and_b32 s5, s2, 15")
e("s_waitcnt lgkmcnt(0)")
e("s_cmp_eq_u32 s3, 12")
e("s_cbranch_scc1 L_nonce")
e("s_cmp_ge_u32 s3, 8")
e("s_cbranch_scc1 L_comm")

vKpat, vVpat = 8, 12
vT = 8
vQ = 16
vKaddr = 32
vVaddr = 36
vS = 44
vP = 52
vQA = 56
vNon = 58
vM, vL = 60, 61
vO = 64
vFrag = 96
vQT = vO

stamp(0)
e("s_lshl_b32 s6, s4, 23")
e("s_lshl_b32 s7, s5, 16")
e("s_add_u32 s6, s6, s7")
e("s_lshl_b32 s44, s3, 13")
e("s_add_u32 s6, s6, s44")
e("s_add_u32 s6, s6, %d" % (28672 * 256))
e("s_add_u32 s40, s18, s6")
e("s_addc_u32 s41, s19, 0")
e("s_add_u32 s42, s20, s6")
e("s_addc_u32 s43, s21, 0")
e("v_lshrrev_b32 v3, 4, v2")
e("v_and_b32 v4, 15, v2")
e("v_lshlrev_b32 v5, 8, v3")
for j in range(4):
    e("v_add_u32 v6, %d, v3" % (4 * j))
    e("v_xor_b32 v7, v6, v4")
    e("v_lshl_add_u32 v%d, v7, 4, v5" % (vKpat + j))
    e("v_and_b32 v6, 7, v6")
    e("v_lshlrev_b32 v6, 1, v6")
    e("v_xor_b32 v7, v6, v4")
    e("v_lshl_add_u32 v%d, v7, 4, v5" % (vVpat + j))
e("v_lshlrev_b32 v5, 8, v4")
e("v_add_u32 v5, s44, v5")
for kk in range(4):
    e("v_add_u32 v6, %d, v3" % (kk * 4))
    e("v_xor_b32 v6, v6, v4")
    e("v_lshl_add_u32 v%d, v6, 4, v5" % (vKaddr + kk))
e("v_lshrrev_b32 v6, 2, v2")
e("v_and_b32 v7, 3, v2")
e("v_lshlrev_b32 v5, 8, v6")
e("v_lshl_add_u32 v5, v7, 3, v5")
e("v_add_u32 v5, s44, v5")
e("v_add_u32 v5, %d, v5" % L_V)
e("v_and_b32 v6, 7, v6")
for dt in range(8):
    e("v_xor_b32 v7, %d, v6" % dt)
    e("v_lshl_add_u32 v%d, v7, 5, v5" % (vVaddr + dt))
e("v_and_b32 v1, 3, v2")
e("v_lshlrev_b32 v1, 8, v1")
e("v_lshl_add_u32 v1, v3, 4, v1")
e("v_add_u32 v1, %d, v1" % L_Q)
e("s_and_b32 s6, s4, 7")
e("s_lshl_b32 s6, s6, 15")
e("s_lshr_b32 s7, s2, 7")
e("s_lshl_b32 s7, s7, 12")
e("s_add_u32 s6, s6, s7")
e("s_lshl_b32 s7, s3, 9")
e("s_add_u32 s6, s6, s7")
e("s_add_u32 s6, s6, %d" % W_QP)
e("v_and_b32 v5, 31, v2")
e("v_lshrrev_b32 v6, 5, v2")
e("v_lshlrev_b32 v6, 14, v6")
e("v_lshl_add_u32 v5, v5, 4, v6")
e("v_add_u32 v%d, s6, v5" % vQA)
e("v_add_u32 v%d, 0x2000, v%d" % (vQA + 1, vQA))
e("s_barrier")
npiece = 0
for base_l, sb, pat in ((L_K, 40, vKpat), (L_V, 42, vVpat)):
    for grp in range(2):
        e("s_add_u32 s45, s44, %d" % (base_l + grp * 4096))
        e("s_mov_b32 m0, s45")
        e("s_nop 0")
        for j in range(4):
            if npiece == 8:
                wait_flag(F_PUB, 4, 6, 7)
            if npiece == 8 + VQ:
                for k in range(2):
                    e("global_load_dwordx4 %s, v%d, s[38:39] sc1" % (vr(vS + 4 * k, 4), vQA + k))
            e("global_load_lds_dwordx4 v%d, s[%d:%d] offset:%d nt" % (pat + j, sb, sb + 1, j * 1024))
            npiece += 1
        e("s_add_u32 s%d, s%d, 4096" % (sb, sb))
        e("s_addc_u32 s%d, s%d, 0" % (sb + 1, sb + 1))
stamp(1)
e("v_mov_b32 v7, %d" % L_NONCE)
e("ds_read_b64 %s, v7" % vr(vNon, 2))
e("s_waitcnt lgkmcnt(0)")
e("v_readfirstlane_b32 s50, v%d" % vNon)
e("v_readfirstlane_b32 s51, v%d" % (vNon + 1))
e("s_waitcnt vmcnt(%d)" % (8 - VQ))
tagcheck([vS, vS + 4], vT)
e("s_cbranch_scc0 L_qok")
poll(["global_load_dwordx4 %s, v%d, s[38:39] sc1" % (vr(vS + 4 * k, 4), vQA + k) for k in range(2)],
     [vS, vS + 4], vT)
lab("L_qok")
e("s_mov_b64 exec, -1")
e("v_add_f32 v%d, v%d, v%d" % (vS, vS, vS + 4))
e("v_add_f32 v%d, v%d, v%d" % (vS + 1, vS + 1, vS + 5))
red_half("v_add_f32", vS, vT)
red_half("v_add_f32", vS + 1, vT)
e("v_cvt_pk_bf16_f32 v%d, v%d, v%d" % (vS, vS, vS + 1))
e("s_lshl_b32 s6, s3, 7")
e("s_add_u32 s6, s6, %d" % L_Q)
e("v_and_b32 v6, 31, v2")
e("v_lshlrev_b32 v6, 2, v6")
e("v_add_u32 v6, s6, v6")
e("ds_write_b32 v6, v%d" % vS)
signal(F_Q, vT, vT + 1)
wait_flag(F_Q, 8, vT, vT + 1)
stamp(2)
for kk in range(4):
    e("ds_read_b128 %s, v1 offset:%d" % (vr(vQ + kk * 4, 4), kk * 64))
for t in range(2):
    for kk in range(4):
        e("ds_read_b128 %s, v%d offset:%d" % (vr(vFrag + (t * 4 + kk) * 4, 4), vKaddr + kk, t * 4096))
e("s_mov_b32 s46, %s" % SCALE)
e("s_mov_b32 s47, %s" % LOG2E)
e("s_waitcnt lgkmcnt(0)")
for t in range(2):
    for kk in range(4):
        c = "0" if kk == 0 else vr(vS + t * 4, 4)
        e("v_mfma_f32_16x16x32_bf16 %s, %s, %s, %s" % (vr(vS + t * 4, 4), vr(vFrag + (t * 4 + kk) * 4, 4), vr(vQ + kk * 4, 4), c))
e("s_nop 7")
e("s_nop 3")
for k in range(4):
    a, b2 = vS + 2 * k, vS + 2 * k + 1
    e("v_cvt_pk_bf16_f32 v%d, v%d, v%d" % (vQT, a, b2))
    e("v_lshlrev_b32 v%d, 16, v%d" % (a, vQT))
    e("v_and_b32 v%d, 0xffff0000, v%d" % (b2, vQT))
    e("v_mul_f32 v%d, s46, v%d" % (a, a))
    e("v_mul_f32 v%d, s46, v%d" % (b2, b2))
    e("v_cvt_pk_bf16_f32 v%d, v%d, v%d" % (vQT, a, b2))
    e("v_lshlrev_b32 v%d, 16, v%d" % (a, vQT))
    e("v_and_b32 v%d, 0xffff0000, v%d" % (b2, vQT))
e("v_max3_f32 v%d, v%d, v%d, v%d" % (vM, vS, vS + 1, vS + 2))
for k in range(3, 7, 2):
    e("v_max3_f32 v%d, v%d, v%d, v%d" % (vM, vM, vS + k, vS + k + 1))
e("v_max_f32 v%d, v%d, v%d" % (vM, vM, vS + 7))
red_rows("v_max_f32", vM, vQT)
for k in range(8):
    e("v_sub_f32 v%d, v%d, v%d" % (vS + k, vS + k, vM))
    e("v_mul_f32 v%d, s47, v%d" % (vS + k, vS + k))
    e("v_exp_f32 v%d, v%d" % (vS + k, vS + k))
e("s_nop 0")
e("v_add_f32 v%d, v%d, v%d" % (vL, vS, vS + 1))
for k in range(2, 8):
    e("v_add_f32 v%d, v%d, v%d" % (vL, vL, vS + k))
for k in range(4):
    e("v_cvt_pk_bf16_f32 v%d, v%d, v%d" % (vP + k, vS + 2 * k, vS + 2 * k + 1))
red_rows("v_add_f32", vL, vQT)
e("v_lshlrev_b32 v5, 9, v4")
e("v_lshl_add_u32 v5, v3, 4, v5")
e("v_add_u32 v5, s44, v5")
e("s_lshl_b32 s45, s3, 5")
e("v_lshlrev_b32 v6, 3, v2")
e("v_add_u32 v6, s45, v6")
e("v_add_u32 v6, %d, v6" % L_MW)
stamp(4)
e("s_waitcnt vmcnt(0)")
stamp(5)
for dt in range(8):
    base = vFrag + dt * 4
    e("ds_read_b64_tr_b16 %s, v%d" % (vr(base, 2), vVaddr + dt))
    e("ds_read_b64_tr_b16 %s, v%d offset:4096" % (vr(base + 2, 2), vVaddr + dt))
for dt in range(8):
    e("s_waitcnt lgkmcnt(%d)" % (14 - 2 * dt))
    e("v_mfma_f32_16x16x32_bf16 %s, %s, %s, 0" % (vr(vO + dt * 4, 4), vr(vFrag + dt * 4, 4), vr(vP, 4)))
e("v_cmp_gt_u32 vcc, 4, v4")
e("s_nop 7")
e("s_and_saveexec_b64 s[48:49], vcc")
for dt in range(8):
    e("ds_write_b128 v5, %s offset:%d" % (vr(vO + dt * 4, 4), dt * 64))
e("v_cmp_gt_u32 vcc, 4, v2")
e("s_nop 1")
e("s_and_b64 exec, exec, vcc")
e("ds_write_b64 v6, %s" % vr(vM, 2))
e("s_mov_b64 exec, s[48:49]")
stamp(6)
signal(F_OW, vT, vT + 1)
e("s_lshr_b32 s6, s3, 1")
e("s_and_b32 s7, s3, 1")
e("s_lshl_b32 s8, s6, 9")
e("s_lshl_b32 s9, s7, 8")
e("s_add_u32 s8, s8, s9")
e("v_and_b32 v5, 31, v2")
e("v_lshrrev_b32 v6, 5, v2")
e("v_lshlrev_b32 v6, 15, v6")
e("v_lshl_add_u32 v5, v5, 3, v6")
e("v_add_u32 v5, s8, v5")
e("s_lshl_b32 s9, s6, 3")
e("s_add_u32 s9, s9, %d" % L_MW)
e("v_mov_b32 v6, s9")
wait_flag(F_OW, 8, vT, vT + 1)
stamp(7)
for k in range(4):
    e("ds_read_b64 %s, v5 offset:%d" % (vr(vFrag + 2 * k, 2), k * 8192))
for k in range(8):
    e("ds_read_b64 %s, v6 offset:%d" % (vr(vFrag + 8 + 2 * k, 2), k * 32))
e("s_waitcnt lgkmcnt(0)")
m = [vFrag + 8 + 2 * k for k in range(8)]
e("v_max3_f32 v%d, v%d, v%d, v%d" % (vM, m[0], m[1], m[2]))
e("v_max3_f32 v%d, v%d, v%d, v%d" % (vM, vM, m[3], m[4]))
e("v_max3_f32 v%d, v%d, v%d, v%d" % (vM, vM, m[5], m[6]))
e("v_max_f32 v%d, v%d, v%d" % (vM, vM, m[7]))
for k in range(8):
    e("v_sub_f32 v%d, v%d, v%d" % (m[k], m[k], vM))
    e("v_mul_f32 v%d, s47, v%d" % (m[k], m[k]))
    e("v_exp_f32 v%d, v%d" % (m[k], m[k]))
e("s_nop 0")
G = vT
e("v_mul_f32 v%d, v%d, v%d" % (G + 5, m[0], m[0] + 1))
for k in range(1, 8):
    e("v_fmac_f32 v%d, v%d, v%d" % (G + 5, m[k], m[k] + 1))
e("v_cmp_gt_u32 vcc, 32, v2")
e("s_nop 1")
for k in range(4):
    e("v_cndmask_b32 v%d, v%d, v%d, vcc" % (m[k], m[k + 4], m[k]))
e("v_mul_f32 v%d, v%d, v%d" % (G, m[0], vFrag))
e("v_mul_f32 v%d, v%d, v%d" % (G + 1, m[0], vFrag + 1))
for k in range(1, 4):
    e("v_fmac_f32 v%d, v%d, v%d" % (G, m[k], vFrag + 2 * k))
    e("v_fmac_f32 v%d, v%d, v%d" % (G + 1, m[k], vFrag + 2 * k + 1))
red_half("v_add_f32", G, G + 2)
red_half("v_add_f32", G + 1, G + 2)
e("v_mov_b32 v%d, s50" % (G + 2))
e("v_mov_b32 v%d, s51" % (G + 3))
e("v_mov_b32 v%d, v%d" % (G + 4, vM))
e("v_mov_b32 v%d, s50" % (G + 6))
e("v_mov_b32 v%d, s51" % (G + 7))
e("s_lshl_b32 s8, s4, 2")
e("s_add_u32 s8, s8, s6")
e("s_lshl_b32 s9, s8, 14")
e("s_lshl_b32 s10, s5, 10")
e("s_add_u32 s9, s9, s10")
e("s_lshl_b32 s10, s7, 9")
e("s_add_u32 s9, s9, s10")
e("s_add_u32 s9, s9, %d" % W_OP)
e("v_and_b32 v5, 31, v2")
e("v_lshlrev_b32 v5, 4, v5")
e("v_add_u32 v5, s9, v5")
e("s_lshl_b32 s9, s8, 4")
e("s_add_u32 s9, s9, s5")
e("s_lshl_b32 s9, s9, 4")
e("s_add_u32 s9, s9, %d" % W_ML)
e("v_mov_b32 v6, s9")
e("s_mov_b32 exec_lo, -1")
e("s_mov_b32 exec_hi, 0")
e("global_store_dwordx4 v5, %s, s[38:39] sc1" % vr(G, 4))
e("s_cmp_eq_u32 s7, 0")
e("s_cbranch_scc0 L_noml")
e("s_mov_b64 exec, 1")
e("global_store_dwordx4 v6, %s, s[38:39] sc1" % vr(G + 4, 4))
lab("L_noml")
e("s_mov_b64 exec, -1")
signal(F_AP, vT, vT + 1)
stamp(8)
stamp_flush(9, 96)
e("s_endpgm")

lab("L_nonce")
e("v_mov_b32 v3, 0")
e("v_mov_b32 v6, %d" % L_FLG)
for k in range(4):
    e("v_mov_b32 v%d, 0" % (12 + k))
e("ds_write_b128 v6, v[12:15]")
e("ds_write_b128 v6, v[12:15] offset:16")
e("ds_write_b128 v6, v[12:15] offset:32")
e("s_and_b32 s6, s2, 31")
e("s_cmp_lg_u32 s6, 0")
e("s_cbranch_scc1 L_nl")
e("s_memrealtime s[6:7]")
e("s_waitcnt lgkmcnt(0)")
e("s_or_b32 s6, s6, 1")
e("v_mov_b32 v4, s6")
e("v_mov_b32 v5, s7")
e("v_mov_b32 v6, 0")
e("v_mov_b32 v7, 0")
e("s_mov_b64 exec, 1")
e("global_atomic_cmpswap_x2 v[8:9], v3, v[4:7], s[36:37] sc0 sc1")
e("s_mov_b64 exec, -1")
e("s_barrier")
e("s_waitcnt vmcnt(0)")
e("v_readfirstlane_b32 s8, v8")
e("v_readfirstlane_b32 s9, v9")
e("s_nop 3")
e("s_cmp_lg_u32 s8, 0")
e("s_cselect_b32 s6, s8, s6")
e("s_cselect_b32 s7, s9, s7")
e("v_mov_b32 v8, s6")
e("v_mov_b32 v9, s7")
e("s_branch L_npub")
lab("L_nl")
e("s_mov_b32 s60, 0")
e("global_load_dwordx2 v[8:9], v3, s[36:37] sc1")
e("s_waitcnt lgkmcnt(0)")
e("s_barrier")
lab("L_npoll")
e("s_waitcnt vmcnt(0)")
e("v_readfirstlane_b32 s8, v8")
e("s_nop 3")
e("s_cmp_lg_u32 s8, 0")
e("s_cbranch_scc1 L_npub")
e("s_add_u32 s60, s60, 1")
e("s_cmp_ge_u32 s60, %d" % SPIN_LIMIT)
e("s_cbranch_scc1 L_npub")
e("global_load_dwordx2 v[8:9], v3, s[36:37] sc1")
e("s_branch L_npoll")
lab("L_npub")
e("v_mov_b32 v7, %d" % L_NONCE)
e("ds_write_b64 v7, v[8:9]")
signal(F_NON, 10, 11)
e("s_endpgm")

lab("L_comm")
vX = 8
vA = 8
vXN = 16
vXr = 16
vWq = 32
vGu = 48
vWo = 32
vWd = 48
aQ = 64
aG = 80
vTT = 96
vG4 = 108
vXo = 124
vOut = 125

stamp(0)
e("s_sub_u32 s3, s3, 8")
e("v_and_b32 v3, 255, v0")
e("v_lshlrev_b32 v4, 4, v2")
e("global_load_dwordx4 %s, v4, s[16:17]" % vr(vX, 4))
e("global_load_dwordx4 %s, v4, s[16:17] offset:1024" % vr(vX + 4, 4))
e("s_and_b32 s6, s2, 7")
e("s_lshr_b32 s7, s2, 7")
e("s_lshl_b32 s7, s7, 1")
e("s_bfe_u32 s8, s2, 0x10003")
e("s_or_b32 s7, s7, s8")
e("s_and_b32 s8, s4, 7")
e("s_lshl_b32 s9, s7, 20")
e("s_lshl_b32 s10, s8, 10")
e("s_add_u32 s9, s9, s10")
e("s_lshl_b32 s10, s6, 7")
e("s_add_u32 s9, s9, s10")
e("s_add_u32 s40, s22, s9")
e("s_addc_u32 s41, s23, 0")
e("v_lshrrev_b32 v5, 3, v3")
e("v_and_b32 v6, 7, v3")
e("v_lshlrev_b32 v7, 13, v5")
e("v_lshl_add_u32 v7, v6, 4, v7")
for j in range(4):
    e("global_load_dwordx4 %s, v7, s[40:41] nt" % vr(vWq + 4 * j, 4))
    if j < 3:
        e("v_add_u32 v7, 0x40000, v7")
e("s_and_b32 s11, s2, 3")
e("s_bfe_u32 s12, s2, 0x10002")
e("s_lshr_b32 s13, s2, 3")
e("s_cmp_ge_u32 s2, 224")
e("s_cbranch_scc1 L_nogu0")
e("s_cmp_eq_u32 s12, 0")
e("s_cselect_b32 s42, s28, s30")
e("s_cselect_b32 s43, s29, s31")
e("s_mul_i32 s9, s11, %d" % (128 * 3584))
e("s_lshl_b32 s10, s13, 7")
e("s_add_u32 s9, s9, s10")
e("s_add_u32 s42, s42, s9")
e("s_addc_u32 s43, s43, 0")
e("s_movk_i32 s9, 3584")
e("v_mul_lo_u32 v7, v5, s9")
e("v_lshl_add_u32 v7, v6, 4, v7")
for j in range(4):
    e("global_load_dwordx4 %s, v7, s[42:43] nt" % vr(vGu + 4 * j, 4))
    if j < 3:
        e("v_add_u32 v7, %d, v7" % (32 * 3584))
lab("L_nogu0")
e("v_and_b32 v7, 3, v2")
e("s_lshl_b32 s9, s2, 2")
e("v_add_u32 v7, s9, v7")
e("v_lshlrev_b32 v%d, 1, v7" % vOut)
e("global_load_ushort v%d, v%d, s[16:17]" % (vXo, vOut))
e("s_barrier")
e("s_cmp_ge_u32 s2, 224")
e("s_cbranch_scc1 L_w5")
e("s_waitcnt vmcnt(9)")
e("s_branch L_wd")
lab("L_w5")
e("s_waitcnt vmcnt(5)")
lab("L_wd")
stamp(1)
for b in range(2):
    for d in range(4):
        src = vX + 4 * b + d
        e("v_lshlrev_b32 v%d, 16, v%d" % (vXN + (2 * d) * 2 + b, src))
        e("v_and_b32 v%d, 0xffff0000, v%d" % (vXN + (2 * d + 1) * 2 + b, src))
for b in range(2):
    s_ = vTT + b
    e("v_add_f32 v%d, v%d, v%d" % (s_, vXN + b, vXN + 2 + b))
    for i in range(2, 8):
        e("v_add_f32 v%d, v%d, v%d" % (s_, s_, vXN + 2 * i + b))
for b in range(2):
    red16("v_add_f32", vTT + b)
    red_rows("v_add_f32", vTT + b, vTT + 8)
    e("v_mul_f32 v%d, %s, v%d" % (vTT + b, f2h(1.0 / 512), vTT + b))
for b in range(2):
    s_ = vTT + 2 + b
    for i in range(8):
        e("v_sub_f32 v%d, v%d, v%d" % (vTT + 8, vXN + 2 * i + b, vTT + b))
        if i == 0:
            e("v_mul_f32 v%d, v%d, v%d" % (s_, vTT + 8, vTT + 8))
        else:
            e("v_fmac_f32 v%d, v%d, v%d" % (s_, vTT + 8, vTT + 8))
for b in range(2):
    red16("v_add_f32", vTT + 2 + b)
    red_rows("v_add_f32", vTT + 2 + b, vTT + 8)
    e("v_mul_f32 v%d, %s, v%d" % (vTT + 2 + b, f2h(1.0 / 512), vTT + 2 + b))
    rnd_bf16(vTT + b, vTT + b)
    rnd_bf16(vTT + 2 + b, vTT + 2 + b)
    e("v_add_f32 v%d, %s, v%d" % (vTT + 2 + b, EPS, vTT + 2 + b))
    rnd_bf16(vTT + 2 + b, vTT + 2 + b)
    e("v_sqrt_f32 v%d, v%d" % (vTT + 2 + b, vTT + 2 + b))
    e("s_nop 0")
    rnd_bf16(vTT + 2 + b, vTT + 2 + b)
    e("v_rcp_f32 v%d, v%d" % (vTT + 4 + b, vTT + 2 + b))
    e("s_nop 0")
for b in range(2):
    for i in range(8):
        x = vXN + 2 * i + b
        e("v_sub_f32 v%d, v%d, v%d" % (x, x, vTT + b))
        rnd_bf16(x, x)
        e("v_mul_f32 v%d, v%d, v%d" % (vTT + 8, x, vTT + 4 + b))
        e("v_fma_f32 v%d, -v%d, v%d, v%d" % (vTT + 9, vTT + 8, vTT + 2 + b, x))
        e("v_fma_f32 v%d, v%d, v%d, v%d" % (x, vTT + 9, vTT + 4 + b, vTT + 8))
        rnd_bf16(x, x)
e("v_lshlrev_b32 v7, 6, v2")
e("v_add_u32 v7, %d, v7" % L_XN)
for k in range(4):
    e("ds_write_b128 v7, %s offset:%d" % (vr(vXN + 4 * k, 4), 16 * k))
e("s_waitcnt lgkmcnt(0)")
e("s_lshl_b32 s9, s7, 10")
e("s_add_u32 s9, s9, %d" % L_XN)
e("v_lshlrev_b32 v7, 3, v5")
e("v_add_u32 v6, s9, v7")
for j in range(4):
    e("ds_read_b64 %s, v6 offset:%d" % (vr(vXr + 2 * j, 2), j * 256))
e("s_lshl_b32 s9, s11, 10")
e("s_add_u32 s9, s9, %d" % L_XN)
e("v_add_u32 v6, s9, v7")
for j in range(4):
    e("ds_read_b64 %s, v6 offset:%d" % (vr(vXr + 8 + 2 * j, 2), j * 256))
e("s_waitcnt vmcnt(1) lgkmcnt(0)")
stamp(2)


def tile_fma(acc, wv, xr):
    for j in range(4):
        for d in range(4):
            src = wv + 4 * j + d
            e("v_lshlrev_b32 v%d, 16, v%d" % (vTT, src))
            e("v_and_b32 v%d, 0xffff0000, v%d" % (vTT + 1, src))
            for b in range(2):
                for h in range(2):
                    a_ = acc + b * 8 + 2 * d + h
                    if j == 0:
                        e("v_mul_f32 v%d, v%d, v%d" % (a_, xr + 2 * j + b, vTT + h))
                    else:
                        e("v_fmac_f32 v%d, v%d, v%d" % (a_, xr + 2 * j + b, vTT + h))


tile_fma(aQ, vWq, vXr)
e("s_cmp_ge_u32 s2, 224")
e("s_cbranch_scc1 L_nogu1")
tile_fma(aG, vGu, vXr + 8)
lab("L_nogu1")
e("s_nop 1")
for k in range(16):
    e("v_add_f32_dpp v%d, v%d, v%d row_shr:8 row_mask:0xf bank_mask:0xf bound_ctrl:0" % (aQ + k, aQ + k, aQ + k))
for k in range(16):
    e("v_add_f32_dpp v%d, v%d, v%d row_shr:8 row_mask:0xf bank_mask:0xf bound_ctrl:0" % (aG + k, aG + k, aG + k))
e("v_lshrrev_b32 v6, 4, v2")
e("s_lshl_b32 s9, s3, 2")
e("v_add_u32 v6, s9, v6")
e("v_lshlrev_b32 v6, 9, v6")
e("v_and_b32 v7, 7, v2")
e("v_lshl_add_u32 v6, v7, 5, v6")
e("v_add_u32 v6, %d, v6" % L_RED)
e("v_and_b32 v7, 8, v2")
e("v_cmp_ne_u32 vcc, 0, v7")
e("s_nop 1")
e("s_and_saveexec_b64 s[48:49], vcc")
for tl, acc in ((0, aQ), (1, aG)):
    for b in range(2):
        for h in range(2):
            e("ds_write_b128 v6, %s offset:%d" % (vr(acc + b * 8 + 4 * h, 4), tl * 8192 + b * 256 + h * 16))
e("s_mov_b64 exec, s[48:49]")
stamp(3)
signal(F_RED, vTT, vTT + 1)
wait_flag(F_NON, 1, vTT, vTT + 1)
e("v_mov_b32 v7, %d" % L_NONCE)
e("ds_read_b64 v[4:5], v7")
e("s_waitcnt lgkmcnt(0)")
e("v_readfirstlane_b32 s50, v4")
e("v_readfirstlane_b32 s51, v5")
wait_flag(F_RED, 4, vTT, vTT + 1)
stamp(4)
e("s_cmp_eq_u32 s3, 0")
e("s_cbranch_scc0 L_notq")
e("v_lshlrev_b32 v6, 3, v2")
e("v_add_u32 v6, %d, v6" % L_RED)
for gi in range(16):
    e("ds_read_b64 %s, v6 offset:%d" % (vr(vWq + 2 * gi, 2), gi * 512))
e("s_waitcnt lgkmcnt(0)")
e("v_add_f32 v%d, v%d, v%d" % (vG4, vWq, vWq + 2))
e("v_add_f32 v%d, v%d, v%d" % (vG4 + 1, vWq + 1, vWq + 3))
for gi in range(2, 16):
    e("v_add_f32 v%d, v%d, v%d" % (vG4, vG4, vWq + 2 * gi))
    e("v_add_f32 v%d, v%d, v%d" % (vG4 + 1, vG4 + 1, vWq + 2 * gi + 1))
e("v_mov_b32 v%d, s50" % (vG4 + 2))
e("v_mov_b32 v%d, s51" % (vG4 + 3))
e("s_lshl_b32 s9, s8, 2")
e("s_add_u32 s9, s9, s7")
e("s_lshl_b32 s9, s9, 13")
e("s_lshl_b32 s10, s6, 9")
e("s_add_u32 s9, s9, s10")
e("s_add_u32 s9, s9, %d" % W_QP)
e("v_lshrrev_b32 v6, 5, v2")
e("v_and_b32 v7, 31, v2")
e("v_lshlrev_b32 v6, 12, v6")
e("v_lshl_add_u32 v6, v7, 4, v6")
e("v_add_u32 v6, s9, v6")
e("global_store_dwordx4 v6, %s, s[38:39] sc1" % vr(vG4, 4))
e("s_branch L_pubdone")
lab("L_notq")
e("s_cmp_eq_u32 s3, 1")
e("s_cbranch_scc0 L_pubdone")
e("s_cmp_ge_u32 s2, 224")
e("s_cbranch_scc1 L_pubdone")
e("v_lshlrev_b32 v6, 2, v2")
e("v_add_u32 v6, %d, v6" % (L_RED + 8192))
for gi in range(16):
    e("ds_read_b32 v%d, v6 offset:%d" % (vWq + 2 * gi, gi * 512))
    e("ds_read_b32 v%d, v6 offset:%d" % (vWq + 2 * gi + 1, gi * 512 + 256))
e("s_waitcnt lgkmcnt(0)")
e("v_add_f32 v%d, v%d, v%d" % (vG4, vWq, vWq + 2))
e("v_add_f32 v%d, v%d, v%d" % (vG4 + 1, vWq + 1, vWq + 3))
for gi in range(2, 16):
    e("v_add_f32 v%d, v%d, v%d" % (vG4, vG4, vWq + 2 * gi))
    e("v_add_f32 v%d, v%d, v%d" % (vG4 + 1, vG4 + 1, vWq + 2 * gi + 1))
e("v_mov_b32 v%d, s50" % (vG4 + 2))
e("v_mov_b32 v%d, s51" % (vG4 + 3))
e("s_lshl_b32 s9, s12, 2")
e("s_add_u32 s9, s9, s11")
e("s_mul_i32 s9, s9, 1792")
e("s_lshl_b32 s10, s13, 6")
e("s_add_u32 s9, s9, s10")
e("s_lshl_b32 s9, s9, 4")
e("s_add_u32 s9, s9, %d" % W_GU)
e("v_lshlrev_b32 v6, 4, v2")
e("v_add_u32 v6, s9, v6")
e("global_store_dwordx4 v6, %s, s[38:39] sc1" % vr(vG4, 4))
lab("L_pubdone")
stamp(5)
signal(F_PUB, vTT, vTT + 1)
vML = 56
vOr = 56
vGa = (16, 108)
e("s_lshr_b32 s14, s2, 3")
e("s_and_b32 s15, s2, 7")
e("v_lshrrev_b32 v5, 3, v3")
e("v_and_b32 v6, 7, v3")
e("v_lshlrev_b32 v4, 10, v5")
e("v_lshl_add_u32 v4, v6, 4, v4")
e("s_lshl_b32 s9, s14, 17")
e("s_lshl_b32 s10, s15, 7")
e("s_add_u32 s9, s9, s10")
e("s_add_u32 s46, s24, s9")
e("s_addc_u32 s47, s25, 0")
e("v_mov_b32 v7, v4")
for j in range(4):
    e("global_load_dwordx4 %s, v7, s[46:47] nt" % vr(vWo + 4 * j, 4))
    if j < 3:
        e("v_add_u32 v7, 0x8000, v7")
e("s_mul_i32 s9, s14, %d" % (56 * 1024))
e("s_add_u32 s9, s9, s10")
e("s_add_u32 s44, s32, s9")
e("s_addc_u32 s45, s33, 0")
e("global_load_dwordx4 %s, v4, s[44:45] nt" % vr(vWd, 4))
e("v_add_u32 v7, 0x8000, v4")
e("v_cmp_gt_u32 vcc, 24, v5")
e("s_nop 1")
e("v_cndmask_b32 v7, v4, v7, vcc")
e("global_load_dwordx4 %s, v7, s[44:45] nt" % vr(vWd + 4, 4))
e("v_lshrrev_b32 v6, 2, v3")
e("v_min_u32 v6, 55, v6")
e("v_and_b32 v7, 3, v3")
e("s_movk_i32 s9, 1792")
e("v_mul_lo_u32 v7, v7, s9")
e("v_add_u32 v7, v7, v6")
e("s_mul_i32 s9, s14, 56")
e("v_add_u32 v7, s9, v7")
e("v_lshlrev_b32 v7, 4, v7")
e("v_add_u32 v%d, %d, v7" % (vA, W_GU))
e("v_add_u32 v%d, %d, v7" % (vA + 1, W_GU + 4 * 1792 * 16))
poll(["global_load_dwordx4 %s, v%d, s[38:39] sc1" % (vr(vG4, 4), vA),
      "global_load_dwordx4 %s, v%d, s[38:39] sc1" % (vr(vG4 + 4, 4), vA + 1)], [vG4, vG4 + 4], vTT)
for qp in ("[1,0,3,2]", "[2,3,0,1]"):
    e("s_nop 1")
    for k in (0, 1, 4, 5):
        e("v_add_f32_dpp v%d, v%d, v%d quad_perm:%s row_mask:0xf bank_mask:0xf" % (vG4 + k, vG4 + k, vG4 + k, qp))
for k in (0, 1, 4, 5):
    rnd_bf16(vG4 + k, vG4 + k)
e("s_mov_b32 s47, %s" % LOG2E)
for k in range(2):
    e("v_mul_f32 v%d, -v%d, s47" % (vTT, vG4 + k))
    e("v_exp_f32 v%d, v%d" % (vTT, vTT))
    e("s_nop 0")
    e("v_add_f32 v%d, 1.0, v%d" % (vTT, vTT))
    e("v_rcp_f32 v%d, v%d" % (vTT, vTT))
    e("s_nop 0")
    e("v_mul_f32 v%d, v%d, v%d" % (vTT, vTT, vG4 + k))
    rnd_bf16(vTT, vTT)
    e("v_mul_f32 v%d, v%d, v%d" % (vTT, vTT, vG4 + 4 + k))
    rnd_bf16(vG4 + 8 + k, vTT)
e("v_lshlrev_b32 v6, 3, v6")
e("v_add_u32 v6, %d, v6" % L_HH)
e("ds_write_b64 v6, %s" % vr(vG4 + 8, 2))
signal(F_H, vTT, vTT + 1)
e("v_bfe_u32 v6, v2, 4, 1")
e("v_and_b32 v7, 15, v2")
e("v_lshlrev_b32 v6, 13, v6")
e("v_lshl_add_u32 v6, v7, 4, v6")
e("s_lshl_b32 s9, s14, 8")
e("s_add_u32 s9, s9, %d" % W_ML)
e("v_add_u32 v%d, s9, v6" % (vA + 2))
e("s_lshl_b32 s9, s14, 14")
e("s_lshl_b32 s10, s3, 12")
e("s_add_u32 s9, s9, s10")
e("s_add_u32 s9, s9, %d" % W_OP)
e("v_lshlrev_b32 v6, 4, v2")
e("v_add_u32 v%d, s9, v6" % vA)
e("v_add_u32 v%d, 0x80000, v%d" % (vA + 1, vA))
wait_flag(F_H, 4, vTT, vTT + 1)
e("v_lshlrev_b32 v6, 3, v5")
e("v_add_u32 v6, %d, v6" % L_HH)
e("ds_read_b64 %s, v6" % vr(vTT + 4, 2))
e("ds_read_b64 %s, v6 offset:256" % vr(vTT + 6, 2))
e("s_waitcnt lgkmcnt(0)")
e("v_cmp_gt_u32 vcc, 24, v5")
e("s_nop 1")
e("v_cndmask_b32 v%d, 0, v%d, vcc" % (vTT + 6, vTT + 6))
e("v_cndmask_b32 v%d, 0, v%d, vcc" % (vTT + 7, vTT + 7))
e("s_waitcnt vmcnt(0)")
for j in range(2):
    for d in range(4):
        src = vWd + 4 * j + d
        e("v_lshlrev_b32 v%d, 16, v%d" % (vTT, src))
        e("v_and_b32 v%d, 0xffff0000, v%d" % (vTT + 1, src))
        for b_ in range(2):
            for h in range(2):
                a_ = aG + b_ * 8 + 2 * d + h
                if j == 0:
                    e("v_mul_f32 v%d, v%d, v%d" % (a_, vTT + 4 + 2 * j + b_, vTT + h))
                else:
                    e("v_fmac_f32 v%d, v%d, v%d" % (a_, vTT + 4 + 2 * j + b_, vTT + h))
stamp(6)
stamp(7)
wait_flag(F_AP, 8, vTT, vTT + 1)
poll(["global_load_dwordx4 %s, v%d, s[38:39] sc1" % (vr(vML, 4), vA + 2)], [vML], vTT, sleep=int(OPT.get("S3", 1)))
lds = []
gr = []
for b_ in range(2):
    for i in range(4):
        lds.append("global_load_dwordx4 %s, v%d, s[38:39] offset:%d sc1" % (vr(vGa[b_] + 4 * i, 4), vA + b_, 1024 * i))
        gr.append(vGa[b_] + 4 * i)
poll(lds, gr, vTT, sleep=int(OPT.get("S3", 1)))
stamp(8)
if STAMP:
    e("s_mov_b32 s85, s60")
e("v_mov_b32 v%d, v%d" % (vTT + 2, vML))
red16("v_max_f32", vTT + 2)
e("v_sub_f32 v%d, v%d, v%d" % (vTT + 3, vML, vTT + 2))
e("v_mul_f32 v%d, s47, v%d" % (vTT + 3, vTT + 3))
e("v_exp_f32 v%d, v%d" % (vTT + 3, vTT + 3))
e("s_lshl_b32 s9, s3, 2")
e("v_mul_f32 v%d, v%d, v%d" % (vTT + 4, vML + 1, vTT + 3))
red16("v_add_f32", vTT + 4)
e("v_rcp_f32 v%d, v%d" % (vTT + 4, vTT + 4))
for b_ in range(2):
    for i in range(4):
        e("s_add_u32 s10, s9, %d" % (b_ * 16 + i))
        e("s_nop 0")
        e("v_readlane_b32 s%d, v%d, s10" % (52 + b_ * 4 + i, vTT + 3))
e("v_readlane_b32 s62, v%d, 0" % (vTT + 4))
e("v_readlane_b32 s63, v%d, 16" % (vTT + 4))
e("s_nop 1")
for b_ in range(2):
    for k in range(2):
        dst = vTT + 4 + 2 * k + b_
        e("v_mul_f32 v%d, s%d, v%d" % (dst, 52 + b_ * 4, vGa[b_] + k))
        for i in range(1, 4):
            e("v_fmac_f32 v%d, s%d, v%d" % (dst, 52 + b_ * 4 + i, vGa[b_] + 4 * i + k))
e("s_lshl_b32 s9, s3, 10")
e("s_add_u32 s9, s9, %d" % L_OC)
e("v_lshlrev_b32 v6, 4, v2")
e("v_add_u32 v6, s9, v6")
e("ds_write_b128 v6, %s" % vr(vTT + 4, 4))
signal(F_OC, vTT, vTT + 1)
e("v_lshlrev_b32 v6, 3, v5")
e("v_add_u32 v6, %d, v6" % L_OC)
wait_flag(F_OC, 4, vTT, vTT + 1)
for j in range(4):
    for cc in range(4):
        e("ds_read_b64 %s, v6 offset:%d" % (vr(vGa[j >> 1] + (j & 1) * 8 + 2 * cc, 2), cc * 1024 + j * 256))
e("s_waitcnt lgkmcnt(0)")
for j in range(4):
    base = vGa[j >> 1] + (j & 1) * 8
    for b_ in range(2):
        o = vOr + 2 * j + b_
        e("v_add_f32 v%d, v%d, v%d" % (o, base + b_, base + 2 + b_))
        e("v_add_f32 v%d, v%d, v%d" % (vTT, base + 4 + b_, base + 6 + b_))
        e("v_add_f32 v%d, v%d, v%d" % (o, o, vTT))
        e("v_mul_f32 v%d, s%d, v%d" % (o, 62 + b_, o))
        rnd_bf16(o, o)
tile_fma(aQ, vWo, vOr)
e("s_nop 1")
for k in range(16):
    e("v_add_f32_dpp v%d, v%d, v%d row_shr:8 row_mask:0xf bank_mask:0xf bound_ctrl:0" % (aQ + k, aQ + k, aQ + k))
for k in range(16):
    e("v_add_f32_dpp v%d, v%d, v%d row_shr:8 row_mask:0xf bank_mask:0xf bound_ctrl:0" % (aG + k, aG + k, aG + k))
e("v_lshrrev_b32 v6, 4, v2")
e("s_lshl_b32 s9, s3, 2")
e("v_add_u32 v6, s9, v6")
e("v_lshlrev_b32 v6, 9, v6")
e("v_and_b32 v7, 7, v2")
e("v_lshl_add_u32 v6, v7, 5, v6")
e("v_add_u32 v6, %d, v6" % L_RED)
e("v_and_b32 v7, 8, v2")
e("v_cmp_ne_u32 vcc, 0, v7")
e("s_nop 1")
e("s_and_saveexec_b64 s[48:49], vcc")
for tl, acc in ((0, aQ), (1, aG)):
    for b_ in range(2):
        for h in range(2):
            e("ds_write_b128 v6, %s offset:%d" % (vr(acc + b_ * 8 + 4 * h, 4), tl * 8192 + b_ * 256 + h * 16))
e("s_mov_b64 exec, s[48:49]")
signal(F_R2, vTT, vTT + 1)
e("s_cmp_ge_u32 s3, 2")
e("s_cbranch_scc1 L_cend")
e("v_lshlrev_b32 v6, 2, v3")
e("v_add_u32 v6, %d, v6" % L_RED)
e("s_mul_i32 s9, s2, %d" % FPS)
e("s_add_u32 s9, s9, %d" % W_FP)
e("v_lshlrev_b32 v4, 4, v3")
e("v_add_u32 v4, s9, v4")
wait_flag(F_R2, 4, vTT, vTT + 1)
stamp(9)
for gi in range(16):
    e("ds_read_b32 v%d, v6 offset:%d" % (16 + gi, gi * 512))
    e("ds_read_b32 v%d, v6 offset:%d" % (32 + gi, 8192 + gi * 512))
e("s_waitcnt lgkmcnt(0)")
e("v_add_f32 v%d, v16, v17" % vG4)
e("v_add_f32 v%d, v32, v33" % (vG4 + 1))
for gi in range(2, 16):
    e("v_add_f32 v%d, v%d, v%d" % (vG4, vG4, 16 + gi))
    e("v_add_f32 v%d, v%d, v%d" % (vG4 + 1, vG4 + 1, 32 + gi))
e("v_mov_b32 v%d, s50" % (vG4 + 2))
e("v_mov_b32 v%d, s51" % (vG4 + 3))
e("global_store_dwordx4 v4, %s, s[38:39] sc1" % vr(vG4, 4))
e("s_cmp_eq_u32 s3, 0")
e("s_cbranch_scc0 L_cend")
e("s_lshl_b32 s9, s2, 2")
e("s_and_b32 s9, s9, 511")
e("s_lshr_b32 s10, s9, 6")
e("s_and_b32 s9, s9, 63")
e("s_lshr_b32 s11, s2, 7")
e("s_lshl_b32 s11, s11, 6")
e("s_add_u32 s9, s9, s11")
e("s_lshl_b32 s9, s9, 4")
e("s_mul_i32 s10, s10, %d" % FPS)
e("s_add_u32 s9, s9, s10")
e("s_add_u32 s9, s9, %d" % W_FP)
e("v_lshrrev_b32 v5, 2, v2")
e("v_and_b32 v7, 3, v2")
e("s_movk_i32 s10, %d" % (8 * FPS))
e("v_mul_lo_u32 v5, v5, s10")
e("v_lshl_add_u32 v5, v7, 4, v5")
e("v_add_u32 v%d, s9, v5" % vA)
e("v_add_u32 v%d, %d, v%d" % (vA + 1, 128 * FPS, vA))
poll(["global_load_dwordx4 %s, v%d, s[38:39] sc1" % (vr(16 + 4 * k, 4), vA + k) for k in range(2)],
     [16, 20], vTT, sleep=int(OPT.get("S4", 1)))
stamp(10)
if STAMP:
    e("s_mov_b32 s84, s60")
e("v_add_f32 v%d, v16, v20" % vG4)
e("v_add_f32 v%d, v17, v21" % (vG4 + 1))
for n in (8, 4):
    e("s_nop 1")
    for k in range(2):
        e("v_add_f32_dpp v%d, v%d, v%d row_ror:%d row_mask:0xf bank_mask:0xf" % (vG4 + k, vG4 + k, vG4 + k, n))
for k in range(2):
    red_rows("v_add_f32", vG4 + k, vTT)
rnd_bf16(vG4, vG4)
rnd_bf16(vG4 + 1, vG4 + 1)
e("v_lshlrev_b32 v%d, 16, v%d" % (vXo, vXo))
e("v_add_f32 v%d, v%d, v%d" % (vG4, vXo, vG4))
rnd_bf16(vG4, vG4)
e("v_add_f32 v%d, v%d, v%d" % (vG4, vG4, vG4 + 1))
e("v_cvt_pk_bf16_f32 v%d, v%d, v%d" % (vG4, vG4, vG4))
e("s_mov_b64 exec, 15")
e("global_store_short v%d, v%d, s[34:35]" % (vOut, vG4))
e("s_mov_b64 exec, -1")
stamp(11)
lab("L_cend")
stamp_flush(14, 64)
lab("L_end")
e("s_endpgm")

out.append(""".section .rodata,"a"
.p2align 6
.amdhsa_kernel %s_kernel
  .amdhsa_next_free_vgpr %d
  .amdhsa_next_free_sgpr 96
  .amdhsa_accum_offset %d
  .amdhsa_group_segment_fixed_size 0
  .amdhsa_kernarg_size 96
  .amdhsa_user_sgpr_count 2
  .amdhsa_user_sgpr_kernarg_segment_ptr 1
  .amdhsa_system_sgpr_workgroup_id_x 1
.end_amdhsa_kernel""" % (NAME, NV, NV))

open(sys.argv[1], "w").write("\n".join(out) + "\n")
```

```python
import struct
import sys

NAME = "parallel_sum__sliding_block_cached__swiglu_ffn__decode"
STAMP = len(sys.argv) > 2 and sys.argv[2] == "stamp"
OPT = dict(a.split("=") for a in sys.argv[3:])


def f2h(x):
    return "0x%08x" % struct.unpack("<I", struct.pack("<f", x))[0]


LOG2E = f2h(1.4426950408889634)
SCALE = f2h(128 ** -0.5)
EPS = f2h(1e-5)

L_K = 0
L_V = 65536
L_XN = 131072
L_RED = 135168
L_Q = 151552
L_MW = 152576
L_NONCE = 152832
L_FIN = 152848
L_FLG = 152976
L_HH = 153024
L_OC = L_XN
LDS_BYTES = 153600
F_RED, F_Q, F_OW, F_R2, F_H, F_NON, F_PUB, F_OC, F_AP, F_RG, F_M, F_RB = range(12)

W_QP = 0x0
W_GU = 0x40000
W_ML = 0x80000
W_OP = 0x100000
W_FP = 0x200000
FPS = 2048 + 64
W_ST = 0x1000000

SPIN_LIMIT = 200000
TH = int(OPT.get("TH", 2))
VQ = int(OPT.get("VQ", 3))
NV = 128

out = []
_pl = [0]


def e(s=""):
    out.append("    " + s)


def lab(s):
    out.append(s + ":")


def vr(b, n):
    return "v[%d:%d]" % (b, b + n - 1)


def stamp(idx):
    if not STAMP:
        return
    e("s_memrealtime s[70:71]")
    e("s_waitcnt lgkmcnt(0)")
    e("s_mov_b32 s%d, s70" % (72 + idx))


def stamp_flush(n, base):
    if not STAMP:
        return
    for i in range(n):
        e("v_mov_b32 v%d, s%d" % (base + i, 72 + i))
    for i in range(n, 16):
        e("v_mov_b32 v%d, 0" % (base + i))
    a = base + 16
    e("v_lshrrev_b32 v%d, 6, v0" % a)
    e("s_lshl_b32 s70, s2, 4")
    e("v_add_u32 v%d, s70, v%d" % (a, a))
    e("v_lshlrev_b32 v%d, 6, v%d" % (a, a))
    e("v_add_u32 v%d, %d, v%d" % (a, W_ST, a))
    e("s_mov_b64 exec, 1")
    for k in range(4):
        e("global_store_dwordx4 v%d, %s, s[38:39] offset:%d" % (a, vr(base + 4 * k, 4), 16 * k))
    e("s_mov_b64 exec, -1")


def rnd_bf16(dst, src):
    e("v_cvt_pk_bf16_f32 v%d, v%d, v%d" % (dst, src, src))
    e("v_lshlrev_b32 v%d, 16, v%d" % (dst, dst))


def red16(op, v):
    for n in (8, 4, 2, 1):
        e("s_nop 1")
        e("%s_dpp v%d, v%d, v%d row_ror:%d row_mask:0xf bank_mask:0xf" % (op, v, v, v, n))


def red_half(op, v, t):
    e("v_mov_b32 v%d, v%d" % (t, v))
    e("s_nop 1")
    e("v_permlane32_swap_b32 v%d, v%d" % (v, t))
    e("s_nop 1")
    e("%s v%d, v%d, v%d" % (op, v, v, t))


def red_rows(op, v, t):
    e("v_mov_b32 v%d, v%d" % (t, v))
    e("s_nop 1")
    e("v_permlane16_swap_b32 v%d, v%d" % (v, t))
    e("s_nop 1")
    e("%s v%d, v%d, v%d" % (op, v, v, t))
    red_half(op, v, t)


def tagcheck(grans, tmp):
    first = True
    for g in grans:
        if first:
            e("v_xor_b32 v%d, s50, v%d" % (tmp, g + 2))
            first = False
        else:
            e("v_xor_b32 v%d, s50, v%d" % (tmp + 1, g + 2))
            e("v_or_b32 v%d, v%d, v%d" % (tmp, tmp, tmp + 1))
        e("v_xor_b32 v%d, s51, v%d" % (tmp + 1, g + 3))
        e("v_or_b32 v%d, v%d, v%d" % (tmp, tmp, tmp + 1))
    e("v_cmp_ne_u32 vcc, 0, v%d" % tmp)
    e("s_nop 1")
    e("s_and_b64 exec, exec, vcc")


def poll(loads, grans, tmp, sleep=1):
    _pl[0] += 1
    L = "L_poll%d" % _pl[0]
    D = "L_polld%d" % _pl[0]
    e("s_mov_b32 s60, 0")
    lab(L)
    for l in loads:
        e(l)
    e("s_waitcnt vmcnt(0)")
    tagcheck(grans, tmp)
    e("s_cbranch_scc0 %s" % D)
    e("s_add_u32 s60, s60, 1")
    e("s_cmp_lt_u32 s60, %d" % SPIN_LIMIT)
    if sleep:
        e("s_sleep %d" % sleep)
    e("s_cbranch_scc1 %s" % L)
    lab(D)
    e("s_mov_b64 exec, -1")


def signal(flag, va, vb):
    e("s_waitcnt lgkmcnt(0)")
    e("v_mov_b32 v%d, %d" % (va, L_FLG + 4 * flag))
    e("v_mov_b32 v%d, 1" % vb)
    e("s_mov_b64 exec, 1")
    e("ds_add_u32 v%d, v%d" % (va, vb))
    e("s_mov_b64 exec, -1")


def wait_flag(flag, target, va, vb):
    _pl[0] += 1
    L = "L_wf%d" % _pl[0]
    e("v_mov_b32 v%d, %d" % (va, L_FLG + 4 * flag))
    lab(L)
    e("ds_read_b32 v%d, v%d" % (vb, va))
    e("s_waitcnt lgkmcnt(0)")
    e("v_readfirstlane_b32 s61, v%d" % vb)
    e("s_nop 3")
    e("s_cmp_ge_u32 s61, %d" % target)
    e("s_cbranch_scc0 %s" % L)


header = """; Kernarg layout for this problem (96 bytes, ptrs only, base s[0:1]):
;   offset   0: d_in[0] A_x  shape=(2, 1, 512) dtype=bfloat16 strides=(1024, 1024, 2) contiguous=True
;   offset   8: d_in[1] A_k_cache  shape=(2, 8, 32768, 128) dtype=bfloat16 strides=(67108864, 8388608, 256, 2) contiguous=True
;   offset  16: d_in[2] A_v_cache  shape=(2, 8, 32768, 128) dtype=bfloat16 strides=(67108864, 8388608, 256, 2) contiguous=True
;   offset  24: d_in[3] A_wq  shape=(512, 4096) dtype=bfloat16 strides=(8192, 2) contiguous=True
;   offset  32: d_in[4] A_wo  shape=(4096, 512) dtype=bfloat16 strides=(1024, 2) contiguous=True
;   offset  40: d_in[5] B_x  shape=(2, 1, 512) dtype=bfloat16 strides=(1024, 1024, 2) contiguous=True
;   offset  48: d_in[6] B_w_gate  shape=(512, 1792) dtype=bfloat16 strides=(3584, 2) contiguous=True
;   offset  56: d_in[7] B_w_up  shape=(512, 1792) dtype=bfloat16 strides=(3584, 2) contiguous=True
;   offset  64: d_in[8] B_w_down  shape=(1792, 512) dtype=bfloat16 strides=(1024, 2) contiguous=True
;   offset  72: d_out     shape=(2, 1, 512) dtype=bfloat16 (2 bytes/elem)
;   offset  80: d_debug   256 bytes
;   offset  88: d_ws      536870912 bytes workspace (unspecified values whenever your kernel or launch list starts; a list's later launches find what earlier ones wrote)
; Override launch geometry by editing the next line (default: block=256,
; grid=ceil(out_elems/256), lds=0). Harness parses it; keep it on one line.
; @launch grid=(256,1,1) block=(832,1,1) lds=%d
.amdgcn_target "amdgcn-amd-amdhsa--gfx950"
.text
.globl %s_kernel
.p2align 8
.type %s_kernel,@function
%s_kernel:""" % (LDS_BYTES, NAME, NAME, NAME)
out.append(header)

e("s_cmp_ge_u32 s2, 256")
e("s_cbranch_scc1 L_end")
e("s_load_dwordx16 s[16:31], s[0:1], 0")
e("s_load_dwordx8 s[32:39], s[0:1], 64")
e("v_lshrrev_b32 v1, 6, v0")
e("v_and_b32 v2, 63, v0")
e("s_nop 0")
e("v_readfirstlane_b32 s3, v1")
e("s_lshr_b32 s4, s2, 4")
e("s_and_b32 s5, s2, 15")
e("s_waitcnt lgkmcnt(0)")
e("s_cmp_eq_u32 s3, 12")
e("s_cbranch_scc1 L_nonce")
e("s_cmp_ge_u32 s3, 8")
e("s_cbranch_scc1 L_comm")

vKpat, vVpat = 8, 12
vT = 8
vQ = 16
vKaddr = 32
vVaddr = 36
vS = 44
vP = 52
vQA = 56
vNon = 58
vM, vL = 60, 61
vO = 64
vFrag = 96
vQT = vO

stamp(0)
e("s_lshl_b32 s6, s4, 23")
e("s_lshl_b32 s7, s5, 16")
e("s_add_u32 s6, s6, s7")
e("s_lshl_b32 s44, s3, 13")
e("s_add_u32 s6, s6, s44")
e("s_add_u32 s6, s6, %d" % (28672 * 256))
e("s_add_u32 s40, s18, s6")
e("s_addc_u32 s41, s19, 0")
e("s_add_u32 s42, s20, s6")
e("s_addc_u32 s43, s21, 0")
e("v_lshrrev_b32 v3, 4, v2")
e("v_and_b32 v4, 15, v2")
e("v_lshlrev_b32 v5, 8, v3")
for j in range(4):
    e("v_add_u32 v6, %d, v3" % (4 * j))
    e("v_xor_b32 v7, v6, v4")
    e("v_lshl_add_u32 v%d, v7, 4, v5" % (vKpat + j))
    e("v_and_b32 v6, 7, v6")
    e("v_lshlrev_b32 v6, 1, v6")
    e("v_xor_b32 v7, v6, v4")
    e("v_lshl_add_u32 v%d, v7, 4, v5" % (vVpat + j))
e("v_lshlrev_b32 v5, 8, v4")
e("v_add_u32 v5, s44, v5")
for kk in range(4):
    e("v_add_u32 v6, %d, v3" % (kk * 4))
    e("v_xor_b32 v6, v6, v4")
    e("v_lshl_add_u32 v%d, v6, 4, v5" % (vKaddr + kk))
e("v_lshrrev_b32 v6, 2, v2")
e("v_and_b32 v7, 3, v2")
e("v_lshlrev_b32 v5, 8, v6")
e("v_lshl_add_u32 v5, v7, 3, v5")
e("v_add_u32 v5, s44, v5")
e("v_add_u32 v5, %d, v5" % L_V)
e("v_and_b32 v6, 7, v6")
for dt in range(8):
    e("v_xor_b32 v7, %d, v6" % dt)
    e("v_lshl_add_u32 v%d, v7, 5, v5" % (vVaddr + dt))
e("v_and_b32 v1, 3, v2")
e("v_lshlrev_b32 v1, 8, v1")
e("v_lshl_add_u32 v1, v3, 4, v1")
e("v_add_u32 v1, %d, v1" % L_Q)
e("s_and_b32 s6, s4, 7")
e("s_lshl_b32 s6, s6, 15")
e("s_lshr_b32 s7, s2, 7")
e("s_lshl_b32 s7, s7, 12")
e("s_add_u32 s6, s6, s7")
e("s_lshl_b32 s7, s3, 9")
e("s_add_u32 s6, s6, s7")
e("s_add_u32 s6, s6, %d" % W_QP)
e("v_and_b32 v5, 31, v2")
e("v_lshrrev_b32 v6, 5, v2")
e("v_lshlrev_b32 v6, 14, v6")
e("v_lshl_add_u32 v5, v5, 4, v6")
e("v_add_u32 v%d, s6, v5" % vQA)
e("v_add_u32 v%d, 0x2000, v%d" % (vQA + 1, vQA))
e("s_barrier")
if OPT.get("KN", "0") == "1":
    wait_flag(F_NON, 1, 6, 7)
npiece = 0
for base_l, sb, pat in ((L_K, 40, vKpat), (L_V, 42, vVpat)):
    for grp in range(2):
        e("s_add_u32 s45, s44, %d" % (base_l + grp * 4096))
        e("s_mov_b32 m0, s45")
        e("s_nop 0")
        for j in range(4):
            if npiece == int(OPT.get("GATE", 8)):
                wait_flag(F_PUB, 1, 6, 7)
            if npiece == 8 + VQ:
                for k in range(2):
                    e("global_load_dwordx4 %s, v%d, s[38:39] sc1" % (vr(vS + 4 * k, 4), vQA + k))
            e("global_load_lds_dwordx4 v%d, s[%d:%d] offset:%d nt" % (pat + j, sb, sb + 1, j * 1024))
            npiece += 1
        e("s_add_u32 s%d, s%d, 4096" % (sb, sb))
        e("s_addc_u32 s%d, s%d, 0" % (sb + 1, sb + 1))
stamp(1)
e("v_mov_b32 v7, %d" % L_NONCE)
e("ds_read_b64 %s, v7" % vr(vNon, 2))
e("s_waitcnt lgkmcnt(0)")
e("v_readfirstlane_b32 s50, v%d" % vNon)
e("v_readfirstlane_b32 s51, v%d" % (vNon + 1))
e("s_waitcnt vmcnt(%d)" % (8 - VQ))
tagcheck([vS, vS + 4], vT)
e("s_cbranch_scc0 L_qok")
poll(["global_load_dwordx4 %s, v%d, s[38:39] sc1" % (vr(vS + 4 * k, 4), vQA + k) for k in range(2)],
     [vS, vS + 4], vT)
lab("L_qok")
e("s_mov_b64 exec, -1")
e("v_add_f32 v%d, v%d, v%d" % (vS, vS, vS + 4))
e("v_add_f32 v%d, v%d, v%d" % (vS + 1, vS + 1, vS + 5))
red_half("v_add_f32", vS, vT)
red_half("v_add_f32", vS + 1, vT)
e("v_cvt_pk_bf16_f32 v%d, v%d, v%d" % (vS, vS, vS + 1))
e("s_lshl_b32 s6, s3, 7")
e("s_add_u32 s6, s6, %d" % L_Q)
e("v_and_b32 v6, 31, v2")
e("v_lshlrev_b32 v6, 2, v6")
e("v_add_u32 v6, s6, v6")
e("ds_write_b32 v6, v%d" % vS)
signal(F_Q, vT, vT + 1)
wait_flag(F_Q, 8, vT, vT + 1)
stamp(2)
for kk in range(4):
    e("ds_read_b128 %s, v1 offset:%d" % (vr(vQ + kk * 4, 4), kk * 64))
for t in range(2):
    for kk in range(4):
        e("ds_read_b128 %s, v%d offset:%d" % (vr(vFrag + (t * 4 + kk) * 4, 4), vKaddr + kk, t * 4096))
e("s_mov_b32 s46, %s" % SCALE)
e("s_mov_b32 s47, %s" % LOG2E)
e("s_waitcnt lgkmcnt(0)")
for t in range(2):
    for kk in range(4):
        c = "0" if kk == 0 else vr(vS + t * 4, 4)
        e("v_mfma_f32_16x16x32_bf16 %s, %s, %s, %s" % (vr(vS + t * 4, 4), vr(vFrag + (t * 4 + kk) * 4, 4), vr(vQ + kk * 4, 4), c))
e("s_nop 7")
e("s_nop 3")
for k in range(4):
    a, b2 = vS + 2 * k, vS + 2 * k + 1
    e("v_cvt_pk_bf16_f32 v%d, v%d, v%d" % (vQT, a, b2))
    e("v_lshlrev_b32 v%d, 16, v%d" % (a, vQT))
    e("v_and_b32 v%d, 0xffff0000, v%d" % (b2, vQT))
    e("v_mul_f32 v%d, s46, v%d" % (a, a))
    e("v_mul_f32 v%d, s46, v%d" % (b2, b2))
    e("v_cvt_pk_bf16_f32 v%d, v%d, v%d" % (vQT, a, b2))
    e("v_lshlrev_b32 v%d, 16, v%d" % (a, vQT))
    e("v_and_b32 v%d, 0xffff0000, v%d" % (b2, vQT))
e("v_max3_f32 v%d, v%d, v%d, v%d" % (vM, vS, vS + 1, vS + 2))
for k in range(3, 7, 2):
    e("v_max3_f32 v%d, v%d, v%d, v%d" % (vM, vM, vS + k, vS + k + 1))
e("v_max_f32 v%d, v%d, v%d" % (vM, vM, vS + 7))
red_rows("v_max_f32", vM, vQT)
e("s_lshl_b32 s45, s3, 4")
e("v_lshlrev_b32 v6, 2, v2")
e("v_add_u32 v6, s45, v6")
e("v_add_u32 v6, %d, v6" % L_MW)
e("s_mov_b64 exec, 15")
e("ds_write_b32 v6, v%d" % vM)
e("s_mov_b64 exec, -1")
signal(F_M, vQT, vQT + 1)
e("v_and_b32 v6, 3, v2")
e("v_lshlrev_b32 v6, 2, v6")
e("v_add_u32 v6, %d, v6" % L_MW)
wait_flag(F_M, 8, vQT, vQT + 1)
for k in range(8):
    e("ds_read_b32 v%d, v6 offset:%d" % (vQT + k, k * 16))
e("s_waitcnt lgkmcnt(0)")
e("v_max3_f32 v%d, v%d, v%d, v%d" % (vM, vQT, vQT + 1, vQT + 2))
e("v_max3_f32 v%d, v%d, v%d, v%d" % (vM, vM, vQT + 3, vQT + 4))
e("v_max3_f32 v%d, v%d, v%d, v%d" % (vM, vM, vQT + 5, vQT + 6))
e("v_max_f32 v%d, v%d, v%d" % (vM, vM, vQT + 7))
for k in range(8):
    e("v_sub_f32 v%d, v%d, v%d" % (vS + k, vS + k, vM))
    e("v_mul_f32 v%d, s47, v%d" % (vS + k, vS + k))
    e("v_exp_f32 v%d, v%d" % (vS + k, vS + k))
e("s_nop 0")
e("v_add_f32 v%d, v%d, v%d" % (vL, vS, vS + 1))
for k in range(2, 8):
    e("v_add_f32 v%d, v%d, v%d" % (vL, vL, vS + k))
for k in range(4):
    e("v_cvt_pk_bf16_f32 v%d, v%d, v%d" % (vP + k, vS + 2 * k, vS + 2 * k + 1))
red_rows("v_add_f32", vL, vQT)
e("v_lshlrev_b32 v5, 9, v4")
e("v_lshl_add_u32 v5, v3, 4, v5")
e("v_add_u32 v5, s44, v5")
e("s_lshl_b32 s45, s3, 4")
e("v_lshlrev_b32 v6, 2, v2")
e("v_add_u32 v6, s45, v6")
e("v_add_u32 v6, %d, v6" % (L_MW + 128))
e("s_mov_b64 exec, 15")
e("ds_write_b32 v6, v%d" % vL)
e("s_mov_b64 exec, -1")
stamp(4)
e("s_waitcnt vmcnt(0)")
stamp(5)
for dt in range(8):
    base = vFrag + dt * 4
    e("ds_read_b64_tr_b16 %s, v%d" % (vr(base, 2), vVaddr + dt))
    e("ds_read_b64_tr_b16 %s, v%d offset:4096" % (vr(base + 2, 2), vVaddr + dt))
for dt in range(8):
    e("s_waitcnt lgkmcnt(%d)" % (14 - 2 * dt))
    e("v_mfma_f32_16x16x32_bf16 %s, %s, %s, 0" % (vr(vO + dt * 4, 4), vr(vFrag + dt * 4, 4), vr(vP, 4)))
e("v_cmp_gt_u32 vcc, 4, v4")
e("s_nop 7")
e("s_and_saveexec_b64 s[48:49], vcc")
for dt in range(8):
    e("ds_write_b128 v5, %s offset:%d" % (vr(vO + dt * 4, 4), dt * 64))
e("s_mov_b64 exec, s[48:49]")
stamp(6)
signal(F_OW, vT, vT + 1)
e("s_lshr_b32 s6, s3, 1")
e("s_and_b32 s7, s3, 1")
e("s_lshl_b32 s8, s6, 9")
e("s_lshl_b32 s9, s7, 8")
e("s_add_u32 s8, s8, s9")
e("v_and_b32 v5, 31, v2")
e("v_lshrrev_b32 v6, 5, v2")
e("v_lshlrev_b32 v6, 15, v6")
e("v_lshl_add_u32 v5, v5, 3, v6")
e("v_add_u32 v5, s8, v5")
e("s_lshl_b32 s9, s6, 2")
e("s_add_u32 s9, s9, %d" % (L_MW + 128))
e("v_mov_b32 v6, s9")
e("v_readlane_b32 s11, v%d, s6" % vM)
wait_flag(F_OW, 8, vT, vT + 1)
stamp(7)
for k in range(4):
    e("ds_read_b64 %s, v5 offset:%d" % (vr(vFrag + 2 * k, 2), k * 8192))
for k in range(8):
    e("ds_read_b32 v%d, v6 offset:%d" % (vFrag + 8 + k, k * 16))
e("s_waitcnt lgkmcnt(0)")
G = vT
e("v_add_f32 v%d, v%d, v%d" % (G, vFrag, vFrag + 2))
e("v_add_f32 v%d, v%d, v%d" % (G + 2, vFrag + 4, vFrag + 6))
e("v_add_f32 v%d, v%d, v%d" % (G + 1, vFrag + 1, vFrag + 3))
e("v_add_f32 v%d, v%d, v%d" % (G + 3, vFrag + 5, vFrag + 7))
e("v_add_f32 v%d, v%d, v%d" % (G, G, G + 2))
e("v_add_f32 v%d, v%d, v%d" % (G + 1, G + 1, G + 3))
e("v_add_f32 v%d, v%d, v%d" % (G + 5, vFrag + 8, vFrag + 9))
for k in range(2, 8):
    e("v_add_f32 v%d, v%d, v%d" % (G + 5, G + 5, vFrag + 8 + k))
red_half("v_add_f32", G, G + 2)
red_half("v_add_f32", G + 1, G + 2)
e("v_mov_b32 v%d, s50" % (G + 2))
e("v_mov_b32 v%d, s51" % (G + 3))
e("v_mov_b32 v%d, s11" % (G + 4))
e("v_mov_b32 v%d, s50" % (G + 6))
e("v_mov_b32 v%d, s51" % (G + 7))
e("s_lshl_b32 s8, s4, 2")
e("s_add_u32 s8, s8, s6")
e("s_lshl_b32 s9, s8, 14")
e("s_lshl_b32 s10, s5, 10")
e("s_add_u32 s9, s9, s10")
e("s_lshl_b32 s10, s7, 9")
e("s_add_u32 s9, s9, s10")
e("s_add_u32 s9, s9, %d" % W_OP)
e("v_and_b32 v5, 31, v2")
e("v_lshlrev_b32 v5, 4, v5")
e("v_add_u32 v5, s9, v5")
e("s_lshl_b32 s9, s8, 4")
e("s_add_u32 s9, s9, s5")
e("s_lshl_b32 s9, s9, 4")
e("s_add_u32 s9, s9, %d" % W_ML)
e("v_mov_b32 v6, s9")
e("s_mov_b32 exec_lo, -1")
e("s_mov_b32 exec_hi, 0")
e("global_store_dwordx4 v5, %s, s[38:39] sc1" % vr(G, 4))
e("s_cmp_eq_u32 s7, 0")
e("s_cbranch_scc0 L_noml")
e("s_mov_b64 exec, 1")
e("global_store_dwordx4 v6, %s, s[38:39] sc1" % vr(G + 4, 4))
lab("L_noml")
e("s_mov_b64 exec, -1")
signal(F_AP, vT, vT + 1)
stamp(8)
stamp_flush(9, 96)
e("s_endpgm")

lab("L_nonce")
e("v_mov_b32 v3, 0")
e("v_mov_b32 v6, %d" % L_FLG)
for k in range(4):
    e("v_mov_b32 v%d, 0" % (12 + k))
e("ds_write_b128 v6, v[12:15]")
e("ds_write_b128 v6, v[12:15] offset:16")
e("ds_write_b128 v6, v[12:15] offset:32")
e("s_and_b32 s6, s2, 31")
e("s_cmp_lg_u32 s6, 0")
e("s_cbranch_scc1 L_nl")
e("s_memrealtime s[6:7]")
e("s_waitcnt lgkmcnt(0)")
e("s_or_b32 s6, s6, 1")
e("v_mov_b32 v4, s6")
e("v_mov_b32 v5, s7")
e("v_mov_b32 v6, 0")
e("v_mov_b32 v7, 0")
e("s_mov_b64 exec, 1")
e("global_atomic_cmpswap_x2 v[8:9], v3, v[4:7], s[36:37] sc0 sc1")
e("s_mov_b64 exec, -1")
e("s_barrier")
e("s_waitcnt vmcnt(0)")
e("v_readfirstlane_b32 s8, v8")
e("v_readfirstlane_b32 s9, v9")
e("s_nop 3")
e("s_cmp_lg_u32 s8, 0")
e("s_cselect_b32 s6, s8, s6")
e("s_cselect_b32 s7, s9, s7")
e("v_mov_b32 v8, s6")
e("v_mov_b32 v9, s7")
e("s_branch L_npub")
lab("L_nl")
e("s_mov_b32 s60, 0")
e("global_load_dwordx2 v[8:9], v3, s[36:37] sc1")
e("s_waitcnt lgkmcnt(0)")
e("s_barrier")
lab("L_npoll")
e("s_waitcnt vmcnt(0)")
e("v_readfirstlane_b32 s8, v8")
e("s_nop 3")
e("s_cmp_lg_u32 s8, 0")
e("s_cbranch_scc1 L_npub")
e("s_add_u32 s60, s60, 1")
e("s_cmp_ge_u32 s60, %d" % SPIN_LIMIT)
e("s_cbranch_scc1 L_npub")
e("global_load_dwordx2 v[8:9], v3, s[36:37] sc1")
e("s_branch L_npoll")
lab("L_npub")
e("v_mov_b32 v7, %d" % L_NONCE)
e("ds_write_b64 v7, v[8:9]")
signal(F_NON, 10, 11)
e("s_endpgm")

lab("L_comm")
vX = 8
vA = 8
vXN = 16
vXr = 16
vWq = 32
vGu = 48
vWo = 32
vWd = 48
aQ = 64
aG = 80
vTT = 96
vG4 = 108
vXo = 124
vOut = 125

stamp(0)
e("s_sub_u32 s3, s3, 8")
e("v_and_b32 v3, 255, v0")
e("v_lshlrev_b32 v4, 4, v2")
e("global_load_dwordx4 %s, v4, s[16:17]" % vr(vX, 4))
e("global_load_dwordx4 %s, v4, s[16:17] offset:1024" % vr(vX + 4, 4))
e("s_and_b32 s6, s2, 7")
e("s_lshr_b32 s7, s2, 7")
e("s_lshl_b32 s7, s7, 1")
e("s_bfe_u32 s8, s2, 0x10003")
e("s_or_b32 s7, s7, s8")
e("s_and_b32 s8, s4, 7")
e("s_lshl_b32 s9, s7, 20")
e("s_lshl_b32 s10, s8, 10")
e("s_add_u32 s9, s9, s10")
e("s_lshl_b32 s10, s6, 7")
e("s_add_u32 s9, s9, s10")
e("s_add_u32 s40, s22, s9")
e("s_addc_u32 s41, s23, 0")
e("v_lshrrev_b32 v5, 3, v3")
e("v_and_b32 v6, 7, v3")
e("v_lshlrev_b32 v7, 13, v5")
e("v_lshl_add_u32 v7, v6, 4, v7")
for j in range(4):
    e("global_load_dwordx4 %s, v7, s[40:41] nt" % vr(vWq + 4 * j, 4))
    if j < 3:
        e("v_add_u32 v7, 0x40000, v7")
e("s_and_b32 s11, s2, 3")
e("s_bfe_u32 s12, s2, 0x10002")
e("s_lshr_b32 s13, s2, 3")
e("s_cmp_ge_u32 s2, 224")
e("s_cbranch_scc1 L_nogu0")
e("s_cmp_eq_u32 s12, 0")
e("s_cselect_b32 s42, s28, s30")
e("s_cselect_b32 s43, s29, s31")
e("s_mul_i32 s9, s11, %d" % (128 * 3584))
e("s_lshl_b32 s10, s13, 7")
e("s_add_u32 s9, s9, s10")
e("s_add_u32 s42, s42, s9")
e("s_addc_u32 s43, s43, 0")
e("s_movk_i32 s9, 3584")
e("v_mul_lo_u32 v7, v5, s9")
e("v_lshl_add_u32 v7, v6, 4, v7")
for j in range(4):
    e("global_load_dwordx4 %s, v7, s[42:43] nt" % vr(vGu + 4 * j, 4))
    if j < 3:
        e("v_add_u32 v7, %d, v7" % (32 * 3584))
lab("L_nogu0")
e("v_and_b32 v7, 3, v2")
e("s_lshl_b32 s9, s2, 2")
e("v_add_u32 v7, s9, v7")
e("v_lshlrev_b32 v%d, 1, v7" % vOut)
e("global_load_ushort v%d, v%d, s[16:17]" % (vXo, vOut))
e("s_barrier")
e("s_cmp_ge_u32 s2, 224")
e("s_cbranch_scc1 L_w5")
e("s_waitcnt vmcnt(9)")
e("s_branch L_wd")
lab("L_w5")
e("s_waitcnt vmcnt(5)")
lab("L_wd")
stamp(1)
for b in range(2):
    for d in range(4):
        src = vX + 4 * b + d
        e("v_lshlrev_b32 v%d, 16, v%d" % (vXN + (2 * d) * 2 + b, src))
        e("v_and_b32 v%d, 0xffff0000, v%d" % (vXN + (2 * d + 1) * 2 + b, src))
for b in range(2):
    s_ = vTT + b
    e("v_add_f32 v%d, v%d, v%d" % (s_, vXN + b, vXN + 2 + b))
    for i in range(2, 8):
        e("v_add_f32 v%d, v%d, v%d" % (s_, s_, vXN + 2 * i + b))
for b in range(2):
    red16("v_add_f32", vTT + b)
    red_rows("v_add_f32", vTT + b, vTT + 8)
    e("v_mul_f32 v%d, %s, v%d" % (vTT + b, f2h(1.0 / 512), vTT + b))
for b in range(2):
    s_ = vTT + 2 + b
    for i in range(8):
        e("v_sub_f32 v%d, v%d, v%d" % (vTT + 8, vXN + 2 * i + b, vTT + b))
        if i == 0:
            e("v_mul_f32 v%d, v%d, v%d" % (s_, vTT + 8, vTT + 8))
        else:
            e("v_fmac_f32 v%d, v%d, v%d" % (s_, vTT + 8, vTT + 8))
for b in range(2):
    red16("v_add_f32", vTT + 2 + b)
    red_rows("v_add_f32", vTT + 2 + b, vTT + 8)
    e("v_mul_f32 v%d, %s, v%d" % (vTT + 2 + b, f2h(1.0 / 512), vTT + 2 + b))
    rnd_bf16(vTT + b, vTT + b)
    rnd_bf16(vTT + 2 + b, vTT + 2 + b)
    e("v_add_f32 v%d, %s, v%d" % (vTT + 2 + b, EPS, vTT + 2 + b))
    rnd_bf16(vTT + 2 + b, vTT + 2 + b)
    e("v_sqrt_f32 v%d, v%d" % (vTT + 2 + b, vTT + 2 + b))
    e("s_nop 0")
    rnd_bf16(vTT + 2 + b, vTT + 2 + b)
    e("v_rcp_f32 v%d, v%d" % (vTT + 4 + b, vTT + 2 + b))
    e("s_nop 0")
for b in range(2):
    for i in range(8):
        x = vXN + 2 * i + b
        e("v_sub_f32 v%d, v%d, v%d" % (x, x, vTT + b))
        rnd_bf16(x, x)
        e("v_mul_f32 v%d, v%d, v%d" % (vTT + 8, x, vTT + 4 + b))
        e("v_fma_f32 v%d, -v%d, v%d, v%d" % (vTT + 9, vTT + 8, vTT + 2 + b, x))
        e("v_fma_f32 v%d, v%d, v%d, v%d" % (x, vTT + 9, vTT + 4 + b, vTT + 8))
        rnd_bf16(x, x)
e("v_lshlrev_b32 v7, 6, v2")
e("v_add_u32 v7, %d, v7" % L_XN)
for k in range(4):
    e("ds_write_b128 v7, %s offset:%d" % (vr(vXN + 4 * k, 4), 16 * k))
e("s_waitcnt lgkmcnt(0)")
e("s_lshl_b32 s9, s7, 10")
e("s_add_u32 s9, s9, %d" % L_XN)
e("v_lshlrev_b32 v7, 3, v5")
e("v_add_u32 v6, s9, v7")
for j in range(4):
    e("ds_read_b64 %s, v6 offset:%d" % (vr(vXr + 2 * j, 2), j * 256))
e("s_lshl_b32 s9, s11, 10")
e("s_add_u32 s9, s9, %d" % L_XN)
e("v_add_u32 v6, s9, v7")
for j in range(4):
    e("ds_read_b64 %s, v6 offset:%d" % (vr(vXr + 8 + 2 * j, 2), j * 256))
e("s_cmp_ge_u32 s2, 224")
e("s_cbranch_scc1 L_w1")
e("s_waitcnt vmcnt(5) lgkmcnt(0)")
e("s_branch L_w1d")
lab("L_w1")
e("s_waitcnt vmcnt(1) lgkmcnt(0)")
lab("L_w1d")
stamp(2)


def tile_fma(acc, wv, xr):
    for j in range(4):
        for d in range(4):
            src = wv + 4 * j + d
            e("v_lshlrev_b32 v%d, 16, v%d" % (vTT, src))
            e("v_and_b32 v%d, 0xffff0000, v%d" % (vTT + 1, src))
            for b in range(2):
                for h in range(2):
                    a_ = acc + b * 8 + 2 * d + h
                    if j == 0:
                        e("v_mul_f32 v%d, v%d, v%d" % (a_, xr + 2 * j + b, vTT + h))
                    else:
                        e("v_fmac_f32 v%d, v%d, v%d" % (a_, xr + 2 * j + b, vTT + h))


def red_write(acc, tl):
    e("s_nop 1")
    for k in range(16):
        e("v_add_f32_dpp v%d, v%d, v%d row_shr:8 row_mask:0xf bank_mask:0xf bound_ctrl:0" % (acc + k, acc + k, acc + k))
    e("v_lshrrev_b32 v6, 4, v2")
    e("s_lshl_b32 s9, s3, 2")
    e("v_add_u32 v6, s9, v6")
    e("v_lshlrev_b32 v6, 9, v6")
    e("v_and_b32 v7, 7, v2")
    e("v_lshl_add_u32 v6, v7, 5, v6")
    e("v_add_u32 v6, %d, v6" % L_RED)
    e("v_and_b32 v7, 8, v2")
    e("v_cmp_ne_u32 vcc, 0, v7")
    e("s_nop 1")
    e("s_and_saveexec_b64 s[48:49], vcc")
    for b in range(2):
        for h in range(2):
            e("ds_write_b128 v6, %s offset:%d" % (vr(acc + b * 8 + 4 * h, 4), tl * 8192 + b * 256 + h * 16))
    e("s_mov_b64 exec, s[48:49]")


tile_fma(aQ, vWq, vXr)
red_write(aQ, 0)
stamp(3)
signal(F_RED, vTT, vTT + 1)
wait_flag(F_NON, 1, vTT, vTT + 1)
e("v_mov_b32 v7, %d" % L_NONCE)
e("ds_read_b64 v[4:5], v7")
e("s_waitcnt lgkmcnt(0)")
e("v_readfirstlane_b32 s50, v4")
e("v_readfirstlane_b32 s51, v5")
e("s_cmp_eq_u32 s3, 0")
e("s_cbranch_scc0 L_notq")
e("s_lshl_b32 s9, s8, 2")
e("s_add_u32 s9, s9, s7")
e("s_lshl_b32 s9, s9, 13")
e("s_lshl_b32 s10, s6, 9")
e("s_add_u32 s9, s9, s10")
e("s_add_u32 s9, s9, %d" % W_QP)
e("v_lshrrev_b32 v6, 5, v2")
e("v_and_b32 v7, 31, v2")
e("v_lshlrev_b32 v6, 12, v6")
e("v_lshl_add_u32 v6, v7, 4, v6")
e("v_add_u32 v4, s9, v6")
e("v_lshlrev_b32 v6, 3, v2")
e("v_add_u32 v6, %d, v6" % L_RED)
wait_flag(F_RED, 4, vTT, vTT + 1)
stamp(4)
for gi in range(16):
    e("ds_read_b64 %s, v6 offset:%d" % (vr(aQ + 2 * gi, 2), gi * 512))
e("s_waitcnt lgkmcnt(0)")
e("v_add_f32 v%d, v%d, v%d" % (vG4, aQ, aQ + 2))
e("v_add_f32 v%d, v%d, v%d" % (vG4 + 1, aQ + 1, aQ + 3))
for gi in range(2, 16):
    e("v_add_f32 v%d, v%d, v%d" % (vG4, vG4, aQ + 2 * gi))
    e("v_add_f32 v%d, v%d, v%d" % (vG4 + 1, vG4 + 1, aQ + 2 * gi + 1))
e("v_mov_b32 v%d, s50" % (vG4 + 2))
e("v_mov_b32 v%d, s51" % (vG4 + 3))
e("global_store_dwordx4 v4, %s, s[38:39] sc1" % vr(vG4, 4))
stamp(5)
signal(F_PUB, vTT, vTT + 1)
lab("L_notq")
e("s_cmp_ge_u32 s2, 224")
e("s_cbranch_scc1 L_pubdone")
e("s_waitcnt vmcnt(1)")
tile_fma(aG, vGu, vXr + 8)
red_write(aG, 1)
signal(F_RG, vTT, vTT + 1)
e("s_cmp_eq_u32 s3, 1")
e("s_cbranch_scc0 L_pubdone")
e("s_lshl_b32 s9, s12, 2")
e("s_add_u32 s9, s9, s11")
e("s_mul_i32 s9, s9, 1792")
e("s_lshl_b32 s10, s13, 6")
e("s_add_u32 s9, s9, s10")
e("s_lshl_b32 s9, s9, 4")
e("s_add_u32 s9, s9, %d" % W_GU)
e("v_lshlrev_b32 v4, 4, v2")
e("v_add_u32 v4, s9, v4")
e("v_lshlrev_b32 v6, 2, v2")
e("v_add_u32 v6, %d, v6" % (L_RED + 8192))
wait_flag(F_RG, 4, vTT, vTT + 1)
for gi in range(16):
    e("ds_read_b32 v%d, v6 offset:%d" % (aQ + 2 * gi, gi * 512))
    e("ds_read_b32 v%d, v6 offset:%d" % (aQ + 2 * gi + 1, gi * 512 + 256))
e("s_waitcnt lgkmcnt(0)")
e("v_add_f32 v%d, v%d, v%d" % (vG4, aQ, aQ + 2))
e("v_add_f32 v%d, v%d, v%d" % (vG4 + 1, aQ + 1, aQ + 3))
for gi in range(2, 16):
    e("v_add_f32 v%d, v%d, v%d" % (vG4, vG4, aQ + 2 * gi))
    e("v_add_f32 v%d, v%d, v%d" % (vG4 + 1, vG4 + 1, aQ + 2 * gi + 1))
e("v_mov_b32 v%d, s50" % (vG4 + 2))
e("v_mov_b32 v%d, s51" % (vG4 + 3))
e("global_store_dwordx4 v4, %s, s[38:39] sc1" % vr(vG4, 4))
lab("L_pubdone")
vML = 56
vOr = 56
vGa = (16, 108)
e("s_lshr_b32 s14, s2, 3")
e("s_and_b32 s15, s2, 7")
e("v_lshrrev_b32 v5, 3, v3")
e("v_and_b32 v6, 7, v3")
e("v_lshlrev_b32 v4, 10, v5")
e("v_lshl_add_u32 v4, v6, 4, v4")
e("s_lshl_b32 s9, s14, 17")
e("s_lshl_b32 s10, s15, 7")
e("s_add_u32 s9, s9, s10")
e("s_add_u32 s46, s24, s9")
e("s_addc_u32 s47, s25, 0")
e("v_mov_b32 v7, v4")
for j in range(4):
    e("global_load_dwordx4 %s, v7, s[46:47] nt" % vr(vWo + 4 * j, 4))
    if j < 3:
        e("v_add_u32 v7, 0x8000, v7")
e("s_mul_i32 s9, s14, %d" % (56 * 1024))
e("s_add_u32 s9, s9, s10")
e("s_add_u32 s44, s32, s9")
e("s_addc_u32 s45, s33, 0")
e("global_load_dwordx4 %s, v4, s[44:45] nt" % vr(vWd, 4))
e("v_add_u32 v7, 0x8000, v4")
e("v_cmp_gt_u32 vcc, 24, v5")
e("s_nop 1")
e("v_cndmask_b32 v7, v4, v7, vcc")
e("global_load_dwordx4 %s, v7, s[44:45] nt" % vr(vWd + 4, 4))
e("v_lshrrev_b32 v6, 2, v3")
e("v_min_u32 v6, 55, v6")
e("v_and_b32 v7, 3, v3")
e("s_movk_i32 s9, 1792")
e("v_mul_lo_u32 v7, v7, s9")
e("v_add_u32 v7, v7, v6")
e("s_mul_i32 s9, s14, 56")
e("v_add_u32 v7, s9, v7")
e("v_lshlrev_b32 v7, 4, v7")
e("v_add_u32 v%d, %d, v7" % (vA, W_GU))
e("v_add_u32 v%d, %d, v7" % (vA + 1, W_GU + 4 * 1792 * 16))
poll(["global_load_dwordx4 %s, v%d, s[38:39] sc1" % (vr(vG4, 4), vA),
      "global_load_dwordx4 %s, v%d, s[38:39] sc1" % (vr(vG4 + 4, 4), vA + 1)], [vG4, vG4 + 4], vTT)
for qp in ("[1,0,3,2]", "[2,3,0,1]"):
    e("s_nop 1")
    for k in (0, 1, 4, 5):
        e("v_add_f32_dpp v%d, v%d, v%d quad_perm:%s row_mask:0xf bank_mask:0xf" % (vG4 + k, vG4 + k, vG4 + k, qp))
for k in (0, 1, 4, 5):
    rnd_bf16(vG4 + k, vG4 + k)
e("s_mov_b32 s47, %s" % LOG2E)
for k in range(2):
    e("v_mul_f32 v%d, -v%d, s47" % (vTT, vG4 + k))
    e("v_exp_f32 v%d, v%d" % (vTT, vTT))
    e("s_nop 0")
    e("v_add_f32 v%d, 1.0, v%d" % (vTT, vTT))
    e("v_rcp_f32 v%d, v%d" % (vTT, vTT))
    e("s_nop 0")
    e("v_mul_f32 v%d, v%d, v%d" % (vTT, vTT, vG4 + k))
    rnd_bf16(vTT, vTT)
    e("v_mul_f32 v%d, v%d, v%d" % (vTT, vTT, vG4 + 4 + k))
    rnd_bf16(vG4 + 8 + k, vTT)
e("v_lshlrev_b32 v6, 3, v6")
e("v_add_u32 v6, %d, v6" % L_HH)
e("ds_write_b64 v6, %s" % vr(vG4 + 8, 2))
signal(F_H, vTT, vTT + 1)
e("v_bfe_u32 v6, v2, 4, 1")
e("v_and_b32 v7, 15, v2")
e("v_lshlrev_b32 v6, 13, v6")
e("v_lshl_add_u32 v6, v7, 4, v6")
e("s_lshl_b32 s9, s14, 8")
e("s_add_u32 s9, s9, %d" % W_ML)
e("v_add_u32 v%d, s9, v6" % (vA + 2))
e("s_lshl_b32 s9, s14, 14")
e("s_lshl_b32 s10, s3, 12")
e("s_add_u32 s9, s9, s10")
e("s_add_u32 s9, s9, %d" % W_OP)
e("v_lshlrev_b32 v6, 4, v2")
e("v_add_u32 v%d, s9, v6" % vA)
e("v_add_u32 v%d, 0x80000, v%d" % (vA + 1, vA))
wait_flag(F_H, 4, vTT, vTT + 1)
e("v_lshlrev_b32 v6, 3, v5")
e("v_add_u32 v6, %d, v6" % L_HH)
e("ds_read_b64 %s, v6" % vr(vTT + 4, 2))
e("ds_read_b64 %s, v6 offset:256" % vr(vTT + 6, 2))
e("s_waitcnt lgkmcnt(0)")
e("v_cmp_gt_u32 vcc, 24, v5")
e("s_nop 1")
e("v_cndmask_b32 v%d, 0, v%d, vcc" % (vTT + 6, vTT + 6))
e("v_cndmask_b32 v%d, 0, v%d, vcc" % (vTT + 7, vTT + 7))
e("s_waitcnt vmcnt(0)")
for j in range(2):
    for d in range(4):
        src = vWd + 4 * j + d
        e("v_lshlrev_b32 v%d, 16, v%d" % (vTT, src))
        e("v_and_b32 v%d, 0xffff0000, v%d" % (vTT + 1, src))
        for b_ in range(2):
            for h in range(2):
                a_ = aG + b_ * 8 + 2 * d + h
                if j == 0:
                    e("v_mul_f32 v%d, v%d, v%d" % (a_, vTT + 4 + 2 * j + b_, vTT + h))
                else:
                    e("v_fmac_f32 v%d, v%d, v%d" % (a_, vTT + 4 + 2 * j + b_, vTT + h))
red_write(aG, 1)
signal(F_RB, vTT, vTT + 1)
vBs = 126
e("s_cmp_ge_u32 s3, 2")
e("s_cbranch_scc1 L_nobs")
e("v_lshlrev_b32 v6, 2, v3")
e("v_add_u32 v6, %d, v6" % (L_RED + 8192))
wait_flag(F_RB, 4, vTT, vTT + 1)
for gi in range(16):
    e("ds_read_b32 v%d, v6 offset:%d" % (aG + gi, gi * 512))
e("s_waitcnt lgkmcnt(0)")
e("v_add_f32 v%d, v%d, v%d" % (vBs, aG, aG + 1))
for gi in range(2, 16):
    e("v_add_f32 v%d, v%d, v%d" % (vBs, vBs, aG + gi))
lab("L_nobs")
vWu = (80, 88, 32, 40)
for j in range(2):
    for d in range(4):
        e("v_lshlrev_b32 v%d, 16, v%d" % (vWu[j] + 2 * d, vWo + 4 * j + d))
        e("v_and_b32 v%d, 0xffff0000, v%d" % (vWu[j] + 2 * d + 1, vWo + 4 * j + d))
for k in range(8):
    e("v_mov_b32 v%d, v%d" % (vTT + k, vWo + 8 + k))
for j in range(2, 4):
    for d in range(4):
        e("v_lshlrev_b32 v%d, 16, v%d" % (vWu[j] + 2 * d, vTT + 4 * (j - 2) + d))
        e("v_and_b32 v%d, 0xffff0000, v%d" % (vWu[j] + 2 * d + 1, vTT + 4 * (j - 2) + d))
stamp(6)
stamp(7)
wait_flag(F_AP, 8, vTT, vTT + 1)
lds = ["global_load_dwordx4 %s, v%d, s[38:39] sc1" % (vr(vML, 4), vA + 2)]
gr = [vML]
for b_ in range(2):
    for i in range(4):
        lds.append("global_load_dwordx4 %s, v%d, s[38:39] offset:%d sc1" % (vr(vGa[b_] + 4 * i, 4), vA + b_, 1024 * i))
        gr.append(vGa[b_] + 4 * i)
poll(lds, gr, vTT, sleep=int(OPT.get("S3", 1)))
stamp(8)
if STAMP:
    e("s_mov_b32 s85, s60")
e("v_mov_b32 v%d, v%d" % (vTT + 2, vML))
red16("v_max_f32", vTT + 2)
e("v_sub_f32 v%d, v%d, v%d" % (vTT + 3, vML, vTT + 2))
e("v_mul_f32 v%d, s47, v%d" % (vTT + 3, vTT + 3))
e("v_exp_f32 v%d, v%d" % (vTT + 3, vTT + 3))
e("s_lshl_b32 s9, s3, 2")
e("v_mul_f32 v%d, v%d, v%d" % (vTT + 4, vML + 1, vTT + 3))
red16("v_add_f32", vTT + 4)
e("v_rcp_f32 v%d, v%d" % (vTT + 4, vTT + 4))
for b_ in range(2):
    for i in range(4):
        e("s_add_u32 s10, s9, %d" % (b_ * 16 + i))
        e("s_nop 0")
        e("v_readlane_b32 s%d, v%d, s10" % (52 + b_ * 4 + i, vTT + 3))
e("v_readlane_b32 s62, v%d, 0" % (vTT + 4))
e("v_readlane_b32 s63, v%d, 16" % (vTT + 4))
e("s_nop 1")
for b_ in range(2):
    for k in range(2):
        dst = vTT + 4 + 2 * k + b_
        e("v_mul_f32 v%d, s%d, v%d" % (dst, 52 + b_ * 4, vGa[b_] + k))
        for i in range(1, 4):
            e("v_fmac_f32 v%d, s%d, v%d" % (dst, 52 + b_ * 4 + i, vGa[b_] + 4 * i + k))
e("s_lshl_b32 s9, s3, 10")
e("s_add_u32 s9, s9, %d" % L_OC)
e("v_lshlrev_b32 v6, 4, v2")
e("v_add_u32 v6, s9, v6")
e("ds_write_b128 v6, %s" % vr(vTT + 4, 4))
signal(F_OC, vTT, vTT + 1)
e("v_lshlrev_b32 v6, 3, v5")
e("v_add_u32 v6, %d, v6" % L_OC)
wait_flag(F_OC, 4, vTT, vTT + 1)
for j in range(4):
    for cc in range(4):
        e("ds_read_b64 %s, v6 offset:%d" % (vr(vGa[j >> 1] + (j & 1) * 8 + 2 * cc, 2), cc * 1024 + j * 256))
e("s_waitcnt lgkmcnt(0)")
for j in range(4):
    base = vGa[j >> 1] + (j & 1) * 8
    for b_ in range(2):
        o = vOr + 2 * j + b_
        e("v_add_f32 v%d, v%d, v%d" % (o, base + b_, base + 2 + b_))
        e("v_add_f32 v%d, v%d, v%d" % (vTT, base + 4 + b_, base + 6 + b_))
        e("v_add_f32 v%d, v%d, v%d" % (o, o, vTT))
        e("v_mul_f32 v%d, s%d, v%d" % (o, 62 + b_, o))
        rnd_bf16(o, o)
for j in range(4):
    for b_ in range(2):
        for p in range(4):
            a_ = aQ + b_ * 8 + 2 * p
            src2 = "0" if j == 0 else vr(a_, 2)
            if j == 0:
                e("v_pk_mul_f32 %s, %s, %s op_sel:[0,%d] op_sel_hi:[1,%d]" % (vr(a_, 2), vr(vWu[j] + 2 * p, 2), vr(vOr + 2 * j, 2), b_, b_))
            else:
                e("v_pk_fma_f32 %s, %s, %s, %s op_sel:[0,%d,0] op_sel_hi:[1,%d,1]" % (vr(a_, 2), vr(vWu[j] + 2 * p, 2), vr(vOr + 2 * j, 2), vr(a_, 2), b_, b_))
red_write(aQ, 0)
signal(F_R2, vTT, vTT + 1)
e("s_cmp_ge_u32 s3, 2")
e("s_cbranch_scc1 L_cend")
e("v_lshlrev_b32 v6, 2, v3")
e("v_add_u32 v6, %d, v6" % L_RED)
e("s_mul_i32 s9, s2, %d" % FPS)
e("s_add_u32 s9, s9, %d" % W_FP)
e("v_lshlrev_b32 v4, 4, v3")
e("v_add_u32 v4, s9, v4")
wait_flag(F_R2, 4, vTT, vTT + 1)
stamp(9)
for gi in range(16):
    e("ds_read_b32 v%d, v6 offset:%d" % (16 + gi, gi * 512))
e("v_mov_b32 v%d, v%d" % (vG4 + 1, vBs))
e("s_waitcnt lgkmcnt(0)")
for st_ in (8, 4, 2, 1):
    for k in range(st_):
        e("v_add_f32 v%d, v%d, v%d" % (16 + k, 16 + k, 16 + k + st_))
e("v_mov_b32 v%d, v16" % vG4)
e("v_mov_b32 v%d, s50" % (vG4 + 2))
e("v_mov_b32 v%d, s51" % (vG4 + 3))
e("global_store_dwordx4 v4, %s, s[38:39] sc1" % vr(vG4, 4))
e("s_cmp_eq_u32 s3, 0")
e("s_cbranch_scc0 L_cend")
e("s_lshl_b32 s9, s2, 2")
e("s_and_b32 s9, s9, 511")
e("s_lshr_b32 s10, s9, 6")
e("s_and_b32 s9, s9, 63")
e("s_lshr_b32 s11, s2, 7")
e("s_lshl_b32 s11, s11, 6")
e("s_add_u32 s9, s9, s11")
e("s_lshl_b32 s9, s9, 4")
e("s_mul_i32 s10, s10, %d" % FPS)
e("s_add_u32 s9, s9, s10")
e("s_add_u32 s9, s9, %d" % W_FP)
e("v_lshrrev_b32 v5, 2, v2")
e("v_and_b32 v7, 3, v2")
e("s_movk_i32 s10, %d" % (8 * FPS))
e("v_mul_lo_u32 v5, v5, s10")
e("v_lshl_add_u32 v5, v7, 4, v5")
e("v_add_u32 v%d, s9, v5" % vA)
e("v_add_u32 v%d, %d, v%d" % (vA + 1, 128 * FPS, vA))
poll(["global_load_dwordx4 %s, v%d, s[38:39] sc1" % (vr(16 + 4 * k, 4), vA + k) for k in range(2)],
     [16, 20], vTT, sleep=int(OPT.get("S4", 1)))
stamp(10)
if STAMP:
    e("s_mov_b32 s84, s60")
e("v_add_f32 v%d, v16, v20" % vG4)
e("v_add_f32 v%d, v17, v21" % (vG4 + 1))
for n in (8, 4):
    e("s_nop 1")
    for k in range(2):
        e("v_add_f32_dpp v%d, v%d, v%d row_ror:%d row_mask:0xf bank_mask:0xf" % (vG4 + k, vG4 + k, vG4 + k, n))
for k in range(2):
    red_rows("v_add_f32", vG4 + k, vTT)
rnd_bf16(vG4, vG4)
rnd_bf16(vG4 + 1, vG4 + 1)
e("v_lshlrev_b32 v%d, 16, v%d" % (vXo, vXo))
e("v_add_f32 v%d, v%d, v%d" % (vG4, vXo, vG4))
rnd_bf16(vG4, vG4)
e("v_add_f32 v%d, v%d, v%d" % (vG4, vG4, vG4 + 1))
e("v_cvt_pk_bf16_f32 v%d, v%d, v%d" % (vG4, vG4, vG4))
e("s_mov_b64 exec, 15")
e("global_store_short v%d, v%d, s[34:35]" % (vOut, vG4))
e("s_mov_b64 exec, -1")
stamp(11)
lab("L_cend")
stamp_flush(14, 64)
lab("L_end")
e("s_endpgm")

out.append(""".section .rodata,"a"
.p2align 6
.amdhsa_kernel %s_kernel
  .amdhsa_next_free_vgpr %d
  .amdhsa_next_free_sgpr 96
  .amdhsa_accum_offset %d
  .amdhsa_group_segment_fixed_size 0
  .amdhsa_kernarg_size 96
  .amdhsa_user_sgpr_count 2
  .amdhsa_user_sgpr_kernarg_segment_ptr 1
  .amdhsa_system_sgpr_workgroup_id_x 1
.end_amdhsa_kernel""" % (NAME, NV, NV))

open(sys.argv[1], "w").write("\n".join(out) + "\n")
```

```python
import struct
import sys

NAME = "parallel_sum__sliding_block_cached__swiglu_ffn__decode"
STAMP = len(sys.argv) > 2 and sys.argv[2] == "stamp"
OPT = dict(a.split("=") for a in sys.argv[3:])


def f2h(x):
    return "0x%08x" % struct.unpack("<I", struct.pack("<f", x))[0]


LOG2E = f2h(1.4426950408889634)
SCALE = f2h(128 ** -0.5)
EPS = f2h(1e-5)

L_K = 0
L_V = 65536
L_XN = 131072
L_RED = 135168
L_Q = 151552
L_MW = 152576
L_NONCE = 152832
L_FIN = 152848
L_FLG = 152976
L_HH = 153024
L_OC = L_XN
LDS_BYTES = 153600
F_RED, F_Q, F_OW, F_R2, F_H, F_NON, F_PUB, F_OC, F_AP, F_RG, F_M, F_RB = range(12)

W_QP = 0x0
W_GU = 0x40000
W_ML = 0x80000
W_OP = 0x100000
W_FP = 0x200000
FPS = 2048 + 64
W_ST = 0x1000000

SPIN_LIMIT = 200000
TH = int(OPT.get("TH", 2))
VQ = int(OPT.get("VQ", 3))
NV = 128

out = []
_pl = [0]


def e(s=""):
    out.append("    " + s)


def lab(s):
    out.append(s + ":")


def vr(b, n):
    return "v[%d:%d]" % (b, b + n - 1)


def stamp(idx):
    if not STAMP:
        return
    e("s_memrealtime s[70:71]")
    e("s_waitcnt lgkmcnt(0)")
    e("s_mov_b32 s%d, s70" % (72 + idx))


def stamp_flush(n, base):
    if not STAMP:
        return
    if OPT.get("DBG", "0") == "1":
        role = 0 if n == 9 else 1
        sel = (1, 2, 5, 8) if role == 0 else (2, 5, 6, 8, 9, 11)
        if role == 1:
            e("s_cmp_lg_u32 s3, 0")
            e("s_cbranch_scc1 L_end")
        for k, i in enumerate(sel):
            e("s_sub_u32 s70, s%d, s50" % (72 + i))
            e("v_mov_b32 v%d, s70" % base)
            e("v_mov_b32 v%d, %d" % (base + 1, 8 + 4 * (role * 4 + k)))
            e("s_mov_b64 exec, 1")
            e("global_atomic_umax v%d, v%d, s[36:37] sc1" % (base + 1, base))
            e("s_mov_b64 exec, -1")
        return
    for i in range(n):
        e("v_mov_b32 v%d, s%d" % (base + i, 72 + i))
    for i in range(n, 16):
        e("v_mov_b32 v%d, 0" % (base + i))
    a = base + 16
    e("v_lshrrev_b32 v%d, 6, v0" % a)
    e("s_lshl_b32 s70, s2, 4")
    e("v_add_u32 v%d, s70, v%d" % (a, a))
    e("v_lshlrev_b32 v%d, 6, v%d" % (a, a))
    e("v_add_u32 v%d, %d, v%d" % (a, W_ST, a))
    e("s_mov_b64 exec, 1")
    for k in range(4):
        e("global_store_dwordx4 v%d, %s, s[38:39] offset:%d" % (a, vr(base + 4 * k, 4), 16 * k))
    e("s_mov_b64 exec, -1")


def rnd_bf16(dst, src):
    e("v_cvt_pk_bf16_f32 v%d, v%d, v%d" % (dst, src, src))
    e("v_lshlrev_b32 v%d, 16, v%d" % (dst, dst))


def red16(op, v):
    for n in (8, 4, 2, 1):
        e("s_nop 1")
        e("%s_dpp v%d, v%d, v%d row_ror:%d row_mask:0xf bank_mask:0xf" % (op, v, v, v, n))


def red_half(op, v, t):
    e("v_mov_b32 v%d, v%d" % (t, v))
    e("s_nop 1")
    e("v_permlane32_swap_b32 v%d, v%d" % (v, t))
    e("s_nop 1")
    e("%s v%d, v%d, v%d" % (op, v, v, t))


def red_rows(op, v, t):
    e("v_mov_b32 v%d, v%d" % (t, v))
    e("s_nop 1")
    e("v_permlane16_swap_b32 v%d, v%d" % (v, t))
    e("s_nop 1")
    e("%s v%d, v%d, v%d" % (op, v, v, t))
    red_half(op, v, t)


def tagcheck(grans, tmp):
    first = True
    for g in grans:
        if first:
            e("v_xor_b32 v%d, s50, v%d" % (tmp, g + 2))
            first = False
        else:
            e("v_xor_b32 v%d, s50, v%d" % (tmp + 1, g + 2))
            e("v_or_b32 v%d, v%d, v%d" % (tmp, tmp, tmp + 1))
        e("v_xor_b32 v%d, s51, v%d" % (tmp + 1, g + 3))
        e("v_or_b32 v%d, v%d, v%d" % (tmp, tmp, tmp + 1))
    e("v_cmp_ne_u32 vcc, 0, v%d" % tmp)
    e("s_nop 1")
    e("s_and_b64 exec, exec, vcc")


def poll(loads, grans, tmp, sleep=1):
    _pl[0] += 1
    L = "L_poll%d" % _pl[0]
    D = "L_polld%d" % _pl[0]
    e("s_mov_b32 s60, 0")
    lab(L)
    for l in loads:
        e(l)
    e("s_waitcnt vmcnt(0)")
    tagcheck(grans, tmp)
    e("s_cbranch_scc0 %s" % D)
    e("s_add_u32 s60, s60, 1")
    e("s_cmp_lt_u32 s60, %d" % SPIN_LIMIT)
    if sleep:
        e("s_sleep %d" % sleep)
    e("s_cbranch_scc1 %s" % L)
    lab(D)
    e("s_mov_b64 exec, -1")


def signal(flag, va, vb):
    e("s_waitcnt lgkmcnt(0)")
    e("v_mov_b32 v%d, %d" % (va, L_FLG + 4 * flag))
    e("v_mov_b32 v%d, 1" % vb)
    e("s_mov_b64 exec, 1")
    e("ds_add_u32 v%d, v%d" % (va, vb))
    e("s_mov_b64 exec, -1")


def wait_flag(flag, target, va, vb):
    _pl[0] += 1
    L = "L_wf%d" % _pl[0]
    e("v_mov_b32 v%d, %d" % (va, L_FLG + 4 * flag))
    lab(L)
    e("ds_read_b32 v%d, v%d" % (vb, va))
    e("s_waitcnt lgkmcnt(0)")
    e("v_readfirstlane_b32 s61, v%d" % vb)
    e("s_nop 3")
    e("s_cmp_ge_u32 s61, %d" % target)
    e("s_cbranch_scc0 %s" % L)


header = """; Kernarg layout for this problem (96 bytes, ptrs only, base s[0:1]):
;   offset   0: d_in[0] A_x  shape=(2, 1, 512) dtype=bfloat16 strides=(1024, 1024, 2) contiguous=True
;   offset   8: d_in[1] A_k_cache  shape=(2, 8, 32768, 128) dtype=bfloat16 strides=(67108864, 8388608, 256, 2) contiguous=True
;   offset  16: d_in[2] A_v_cache  shape=(2, 8, 32768, 128) dtype=bfloat16 strides=(67108864, 8388608, 256, 2) contiguous=True
;   offset  24: d_in[3] A_wq  shape=(512, 4096) dtype=bfloat16 strides=(8192, 2) contiguous=True
;   offset  32: d_in[4] A_wo  shape=(4096, 512) dtype=bfloat16 strides=(1024, 2) contiguous=True
;   offset  40: d_in[5] B_x  shape=(2, 1, 512) dtype=bfloat16 strides=(1024, 1024, 2) contiguous=True
;   offset  48: d_in[6] B_w_gate  shape=(512, 1792) dtype=bfloat16 strides=(3584, 2) contiguous=True
;   offset  56: d_in[7] B_w_up  shape=(512, 1792) dtype=bfloat16 strides=(3584, 2) contiguous=True
;   offset  64: d_in[8] B_w_down  shape=(1792, 512) dtype=bfloat16 strides=(1024, 2) contiguous=True
;   offset  72: d_out     shape=(2, 1, 512) dtype=bfloat16 (2 bytes/elem)
;   offset  80: d_debug   256 bytes
;   offset  88: d_ws      536870912 bytes workspace (unspecified values whenever your kernel or launch list starts; a list's later launches find what earlier ones wrote)
; Override launch geometry by editing the next line (default: block=256,
; grid=ceil(out_elems/256), lds=0). Harness parses it; keep it on one line.
; @launch grid=(256,1,1) block=(832,1,1) lds=%d
.amdgcn_target "amdgcn-amd-amdhsa--gfx950"
.text
.globl %s_kernel
.p2align 8
.type %s_kernel,@function
%s_kernel:""" % (LDS_BYTES, NAME, NAME, NAME)
out.append(header)

e("s_cmp_ge_u32 s2, 256")
e("s_cbranch_scc1 L_end")
e("s_load_dwordx16 s[16:31], s[0:1], 0")
e("s_load_dwordx8 s[32:39], s[0:1], 64")
e("v_lshrrev_b32 v1, 6, v0")
e("v_and_b32 v2, 63, v0")
e("s_nop 0")
e("v_readfirstlane_b32 s3, v1")
e("s_lshr_b32 s4, s2, 4")
e("s_and_b32 s5, s2, 15")
e("s_waitcnt lgkmcnt(0)")
e("s_cmp_eq_u32 s3, 12")
e("s_cbranch_scc1 L_nonce")
e("s_cmp_ge_u32 s3, 8")
e("s_cbranch_scc1 L_comm")

vKpat, vVpat = 8, 12
vT = 8
vQ = 16
vKaddr = 32
vVaddr = 36
vS = 44
vP = 52
vQA = 56
vNon = 58
vM, vL = 60, 61
vO = 64
vFrag = 96
vQT = vO

stamp(0)
e("s_lshl_b32 s6, s4, 23")
e("s_lshl_b32 s7, s5, 16")
e("s_add_u32 s6, s6, s7")
e("s_lshl_b32 s44, s3, 13")
e("s_add_u32 s6, s6, s44")
e("s_add_u32 s6, s6, %d" % (28672 * 256))
e("s_add_u32 s40, s18, s6")
e("s_addc_u32 s41, s19, 0")
e("s_add_u32 s42, s20, s6")
e("s_addc_u32 s43, s21, 0")
e("v_lshrrev_b32 v3, 4, v2")
e("v_and_b32 v4, 15, v2")
e("v_lshlrev_b32 v5, 8, v3")
for j in range(4):
    e("v_add_u32 v6, %d, v3" % (4 * j))
    e("v_xor_b32 v7, v6, v4")
    e("v_lshl_add_u32 v%d, v7, 4, v5" % (vKpat + j))
    e("v_and_b32 v6, 7, v6")
    e("v_lshlrev_b32 v6, 1, v6")
    e("v_xor_b32 v7, v6, v4")
    e("v_lshl_add_u32 v%d, v7, 4, v5" % (vVpat + j))
e("v_lshlrev_b32 v5, 8, v4")
e("v_add_u32 v5, s44, v5")
for kk in range(4):
    e("v_add_u32 v6, %d, v3" % (kk * 4))
    e("v_xor_b32 v6, v6, v4")
    e("v_lshl_add_u32 v%d, v6, 4, v5" % (vKaddr + kk))
e("v_lshrrev_b32 v6, 2, v2")
e("v_and_b32 v7, 3, v2")
e("v_lshlrev_b32 v5, 8, v6")
e("v_lshl_add_u32 v5, v7, 3, v5")
e("v_add_u32 v5, s44, v5")
e("v_add_u32 v5, %d, v5" % L_V)
e("v_and_b32 v6, 7, v6")
for dt in range(8):
    e("v_xor_b32 v7, %d, v6" % dt)
    e("v_lshl_add_u32 v%d, v7, 5, v5" % (vVaddr + dt))
e("v_and_b32 v1, 3, v2")
e("v_lshlrev_b32 v1, 8, v1")
e("v_lshl_add_u32 v1, v3, 4, v1")
e("v_add_u32 v1, %d, v1" % L_Q)
e("s_and_b32 s6, s4, 7")
e("s_lshl_b32 s6, s6, 15")
e("s_lshr_b32 s7, s2, 7")
e("s_lshl_b32 s7, s7, 12")
e("s_add_u32 s6, s6, s7")
e("s_lshl_b32 s7, s3, 9")
e("s_add_u32 s6, s6, s7")
e("s_add_u32 s6, s6, %d" % W_QP)
e("v_and_b32 v5, 31, v2")
e("v_lshrrev_b32 v6, 5, v2")
e("v_lshlrev_b32 v6, 14, v6")
e("v_lshl_add_u32 v5, v5, 4, v6")
e("v_add_u32 v%d, s6, v5" % vQA)
e("v_add_u32 v%d, 0x2000, v%d" % (vQA + 1, vQA))
e("s_barrier")
if OPT.get("KN", "0") == "1":
    wait_flag(F_NON, 1, 6, 7)
npiece = 0
for base_l, sb, pat in ((L_K, 40, vKpat), (L_V, 42, vVpat)):
    for grp in range(2):
        e("s_add_u32 s45, s44, %d" % (base_l + grp * 4096))
        e("s_mov_b32 m0, s45")
        e("s_nop 0")
        for j in range(4):
            if npiece == int(OPT.get("GATE", 8)):
                wait_flag(F_PUB, 1, 6, 7)
            if npiece == 8 + VQ:
                for k in range(2):
                    e("global_load_dwordx4 %s, v%d, s[38:39] sc1" % (vr(vS + 4 * k, 4), vQA + k))
            e("global_load_lds_dwordx4 v%d, s[%d:%d] offset:%d nt" % (pat + j, sb, sb + 1, j * 1024))
            npiece += 1
        e("s_add_u32 s%d, s%d, 4096" % (sb, sb))
        e("s_addc_u32 s%d, s%d, 0" % (sb + 1, sb + 1))
stamp(1)
e("v_mov_b32 v7, %d" % L_NONCE)
e("ds_read_b64 %s, v7" % vr(vNon, 2))
e("s_waitcnt lgkmcnt(0)")
e("v_readfirstlane_b32 s50, v%d" % vNon)
e("v_readfirstlane_b32 s51, v%d" % (vNon + 1))
e("s_waitcnt vmcnt(%d)" % (8 - VQ))
tagcheck([vS, vS + 4], vT)
e("s_cbranch_scc0 L_qok")
poll(["global_load_dwordx4 %s, v%d, s[38:39] sc1" % (vr(vS + 4 * k, 4), vQA + k) for k in range(2)],
     [vS, vS + 4], vT)
lab("L_qok")
e("s_mov_b64 exec, -1")
e("v_add_f32 v%d, v%d, v%d" % (vS, vS, vS + 4))
e("v_add_f32 v%d, v%d, v%d" % (vS + 1, vS + 1, vS + 5))
red_half("v_add_f32", vS, vT)
red_half("v_add_f32", vS + 1, vT)
e("v_cvt_pk_bf16_f32 v%d, v%d, v%d" % (vS, vS, vS + 1))
e("s_lshl_b32 s6, s3, 7")
e("s_add_u32 s6, s6, %d" % L_Q)
e("v_and_b32 v6, 31, v2")
e("v_lshlrev_b32 v6, 2, v6")
e("v_add_u32 v6, s6, v6")
e("ds_write_b32 v6, v%d" % vS)
signal(F_Q, vT, vT + 1)
wait_flag(F_Q, 8, vT, vT + 1)
stamp(2)
for kk in range(4):
    e("ds_read_b128 %s, v1 offset:%d" % (vr(vQ + kk * 4, 4), kk * 64))
for t in range(2):
    for kk in range(4):
        e("ds_read_b128 %s, v%d offset:%d" % (vr(vFrag + (t * 4 + kk) * 4, 4), vKaddr + kk, t * 4096))
e("s_mov_b32 s46, %s" % SCALE)
e("s_mov_b32 s47, %s" % LOG2E)
e("s_waitcnt lgkmcnt(0)")
for t in range(2):
    for kk in range(4):
        c = "0" if kk == 0 else vr(vS + t * 4, 4)
        e("v_mfma_f32_16x16x32_bf16 %s, %s, %s, %s" % (vr(vS + t * 4, 4), vr(vFrag + (t * 4 + kk) * 4, 4), vr(vQ + kk * 4, 4), c))
e("s_nop 7")
e("s_nop 3")
for k in range(4):
    a, b2 = vS + 2 * k, vS + 2 * k + 1
    e("v_cvt_pk_bf16_f32 v%d, v%d, v%d" % (vQT, a, b2))
    e("v_lshlrev_b32 v%d, 16, v%d" % (a, vQT))
    e("v_and_b32 v%d, 0xffff0000, v%d" % (b2, vQT))
    e("v_mul_f32 v%d, s46, v%d" % (a, a))
    e("v_mul_f32 v%d, s46, v%d" % (b2, b2))
    e("v_cvt_pk_bf16_f32 v%d, v%d, v%d" % (vQT, a, b2))
    e("v_lshlrev_b32 v%d, 16, v%d" % (a, vQT))
    e("v_and_b32 v%d, 0xffff0000, v%d" % (b2, vQT))
e("v_max3_f32 v%d, v%d, v%d, v%d" % (vM, vS, vS + 1, vS + 2))
for k in range(3, 7, 2):
    e("v_max3_f32 v%d, v%d, v%d, v%d" % (vM, vM, vS + k, vS + k + 1))
e("v_max_f32 v%d, v%d, v%d" % (vM, vM, vS + 7))
red_rows("v_max_f32", vM, vQT)
e("s_lshl_b32 s45, s3, 4")
e("v_lshlrev_b32 v6, 2, v2")
e("v_add_u32 v6, s45, v6")
e("v_add_u32 v6, %d, v6" % L_MW)
e("s_mov_b64 exec, 15")
e("ds_write_b32 v6, v%d" % vM)
e("s_mov_b64 exec, -1")
signal(F_M, vQT, vQT + 1)
e("v_and_b32 v6, 3, v2")
e("v_lshlrev_b32 v6, 2, v6")
e("v_add_u32 v6, %d, v6" % L_MW)
wait_flag(F_M, 8, vQT, vQT + 1)
for k in range(8):
    e("ds_read_b32 v%d, v6 offset:%d" % (vQT + k, k * 16))
e("s_waitcnt lgkmcnt(0)")
e("v_max3_f32 v%d, v%d, v%d, v%d" % (vM, vQT, vQT + 1, vQT + 2))
e("v_max3_f32 v%d, v%d, v%d, v%d" % (vM, vM, vQT + 3, vQT + 4))
e("v_max3_f32 v%d, v%d, v%d, v%d" % (vM, vM, vQT + 5, vQT + 6))
e("v_max_f32 v%d, v%d, v%d" % (vM, vM, vQT + 7))
for k in range(8):
    e("v_sub_f32 v%d, v%d, v%d" % (vS + k, vS + k, vM))
    e("v_mul_f32 v%d, s47, v%d" % (vS + k, vS + k))
    e("v_exp_f32 v%d, v%d" % (vS + k, vS + k))
e("s_nop 0")
e("v_add_f32 v%d, v%d, v%d" % (vL, vS, vS + 1))
for k in range(2, 8):
    e("v_add_f32 v%d, v%d, v%d" % (vL, vL, vS + k))
for k in range(4):
    e("v_cvt_pk_bf16_f32 v%d, v%d, v%d" % (vP + k, vS + 2 * k, vS + 2 * k + 1))
red_rows("v_add_f32", vL, vQT)
e("v_lshlrev_b32 v5, 9, v4")
e("v_lshl_add_u32 v5, v3, 4, v5")
e("v_add_u32 v5, s44, v5")
e("s_lshl_b32 s45, s3, 4")
e("v_lshlrev_b32 v6, 2, v2")
e("v_add_u32 v6, s45, v6")
e("v_add_u32 v6, %d, v6" % (L_MW + 128))
e("s_mov_b64 exec, 15")
e("ds_write_b32 v6, v%d" % vL)
e("s_mov_b64 exec, -1")
stamp(4)
e("s_waitcnt vmcnt(0)")
stamp(5)
for dt in range(8):
    base = vFrag + dt * 4
    e("ds_read_b64_tr_b16 %s, v%d" % (vr(base, 2), vVaddr + dt))
    e("ds_read_b64_tr_b16 %s, v%d offset:4096" % (vr(base + 2, 2), vVaddr + dt))
for dt in range(8):
    e("s_waitcnt lgkmcnt(%d)" % (14 - 2 * dt))
    e("v_mfma_f32_16x16x32_bf16 %s, %s, %s, 0" % (vr(vO + dt * 4, 4), vr(vFrag + dt * 4, 4), vr(vP, 4)))
e("v_cmp_gt_u32 vcc, 4, v4")
e("s_nop 7")
e("s_and_saveexec_b64 s[48:49], vcc")
for dt in range(8):
    e("ds_write_b128 v5, %s offset:%d" % (vr(vO + dt * 4, 4), dt * 64))
e("s_mov_b64 exec, s[48:49]")
stamp(6)
signal(F_OW, vT, vT + 1)
e("s_lshr_b32 s6, s3, 1")
e("s_and_b32 s7, s3, 1")
e("s_lshl_b32 s8, s6, 9")
e("s_lshl_b32 s9, s7, 8")
e("s_add_u32 s8, s8, s9")
e("v_and_b32 v5, 31, v2")
e("v_lshrrev_b32 v6, 5, v2")
e("v_lshlrev_b32 v6, 15, v6")
e("v_lshl_add_u32 v5, v5, 3, v6")
e("v_add_u32 v5, s8, v5")
e("s_lshl_b32 s9, s6, 2")
e("s_add_u32 s9, s9, %d" % (L_MW + 128))
e("v_mov_b32 v6, s9")
e("v_readlane_b32 s11, v%d, s6" % vM)
wait_flag(F_OW, 8, vT, vT + 1)
stamp(7)
for k in range(4):
    e("ds_read_b64 %s, v5 offset:%d" % (vr(vFrag + 2 * k, 2), k * 8192))
for k in range(8):
    e("ds_read_b32 v%d, v6 offset:%d" % (vFrag + 8 + k, k * 16))
e("s_waitcnt lgkmcnt(0)")
G = vT
e("v_add_f32 v%d, v%d, v%d" % (G, vFrag, vFrag + 2))
e("v_add_f32 v%d, v%d, v%d" % (G + 2, vFrag + 4, vFrag + 6))
e("v_add_f32 v%d, v%d, v%d" % (G + 1, vFrag + 1, vFrag + 3))
e("v_add_f32 v%d, v%d, v%d" % (G + 3, vFrag + 5, vFrag + 7))
e("v_add_f32 v%d, v%d, v%d" % (G, G, G + 2))
e("v_add_f32 v%d, v%d, v%d" % (G + 1, G + 1, G + 3))
e("v_add_f32 v%d, v%d, v%d" % (G + 5, vFrag + 8, vFrag + 9))
for k in range(2, 8):
    e("v_add_f32 v%d, v%d, v%d" % (G + 5, G + 5, vFrag + 8 + k))
red_half("v_add_f32", G, G + 2)
red_half("v_add_f32", G + 1, G + 2)
e("v_mov_b32 v%d, s50" % (G + 2))
e("v_mov_b32 v%d, s51" % (G + 3))
e("v_mov_b32 v%d, s11" % (G + 4))
e("v_mov_b32 v%d, s50" % (G + 6))
e("v_mov_b32 v%d, s51" % (G + 7))
e("s_lshl_b32 s8, s4, 2")
e("s_add_u32 s8, s8, s6")
e("s_lshl_b32 s9, s8, 14")
e("s_lshl_b32 s10, s5, 10")
e("s_add_u32 s9, s9, s10")
e("s_lshl_b32 s10, s7, 9")
e("s_add_u32 s9, s9, s10")
e("s_add_u32 s9, s9, %d" % W_OP)
e("v_and_b32 v5, 31, v2")
e("v_lshlrev_b32 v5, 4, v5")
e("v_add_u32 v5, s9, v5")
e("s_lshl_b32 s9, s8, 4")
e("s_add_u32 s9, s9, s5")
e("s_lshl_b32 s9, s9, 4")
e("s_add_u32 s9, s9, %d" % W_ML)
e("v_mov_b32 v6, s9")
e("s_mov_b32 exec_lo, -1")
e("s_mov_b32 exec_hi, 0")
e("global_store_dwordx4 v5, %s, s[38:39] sc1" % vr(G, 4))
e("s_cmp_eq_u32 s7, 0")
e("s_cbranch_scc0 L_noml")
e("s_mov_b64 exec, 1")
e("global_store_dwordx4 v6, %s, s[38:39] sc1" % vr(G + 4, 4))
lab("L_noml")
e("s_mov_b64 exec, -1")
signal(F_AP, vT, vT + 1)
stamp(8)
stamp_flush(9, 96)
e("s_endpgm")

lab("L_nonce")
e("v_mov_b32 v3, 0")
e("v_mov_b32 v6, %d" % L_FLG)
for k in range(4):
    e("v_mov_b32 v%d, 0" % (12 + k))
e("ds_write_b128 v6, v[12:15]")
e("ds_write_b128 v6, v[12:15] offset:16")
e("ds_write_b128 v6, v[12:15] offset:32")
e("s_and_b32 s6, s2, 31")
e("s_cmp_lg_u32 s6, 0")
e("s_cbranch_scc1 L_nl")
e("s_memrealtime s[6:7]")
e("s_waitcnt lgkmcnt(0)")
e("s_or_b32 s6, s6, 1")
e("v_mov_b32 v4, s6")
e("v_mov_b32 v5, s7")
e("v_mov_b32 v6, 0")
e("v_mov_b32 v7, 0")
e("s_mov_b64 exec, 1")
e("global_atomic_cmpswap_x2 v[8:9], v3, v[4:7], s[36:37] sc0 sc1")
e("s_mov_b64 exec, -1")
e("s_barrier")
e("s_waitcnt vmcnt(0)")
e("v_readfirstlane_b32 s8, v8")
e("v_readfirstlane_b32 s9, v9")
e("s_nop 3")
e("s_cmp_lg_u32 s8, 0")
e("s_cselect_b32 s6, s8, s6")
e("s_cselect_b32 s7, s9, s7")
e("v_mov_b32 v8, s6")
e("v_mov_b32 v9, s7")
e("s_branch L_npub")
lab("L_nl")
e("s_mov_b32 s60, 0")
e("global_load_dwordx2 v[8:9], v3, s[36:37] sc1")
e("s_waitcnt lgkmcnt(0)")
e("s_barrier")
lab("L_npoll")
e("s_waitcnt vmcnt(0)")
e("v_readfirstlane_b32 s8, v8")
e("s_nop 3")
e("s_cmp_lg_u32 s8, 0")
e("s_cbranch_scc1 L_npub")
e("s_add_u32 s60, s60, 1")
e("s_cmp_ge_u32 s60, %d" % SPIN_LIMIT)
e("s_cbranch_scc1 L_npub")
e("global_load_dwordx2 v[8:9], v3, s[36:37] sc1")
e("s_branch L_npoll")
lab("L_npub")
e("v_mov_b32 v7, %d" % L_NONCE)
e("ds_write_b64 v7, v[8:9]")
signal(F_NON, 10, 11)
e("s_endpgm")

lab("L_comm")
vX = 8
vA = 8
vXN = 16
vXr = 16
vWq = 32
vGu = 48
vWo = 32
vWd = 48
aQ = 64
aG = 80
vTT = 96
vG4 = 108
vXo = 124
vOut = 125

stamp(0)
e("s_sub_u32 s3, s3, 8")
e("v_and_b32 v3, 255, v0")
e("v_lshlrev_b32 v4, 4, v2")
e("global_load_dwordx4 %s, v4, s[16:17]" % vr(vX, 4))
e("global_load_dwordx4 %s, v4, s[16:17] offset:1024" % vr(vX + 4, 4))
e("s_and_b32 s6, s2, 7")
e("s_lshr_b32 s7, s2, 7")
e("s_lshl_b32 s7, s7, 1")
e("s_bfe_u32 s8, s2, 0x10003")
e("s_or_b32 s7, s7, s8")
e("s_and_b32 s8, s4, 7")
e("s_lshl_b32 s9, s7, 20")
e("s_lshl_b32 s10, s8, 10")
e("s_add_u32 s9, s9, s10")
e("s_lshl_b32 s10, s6, 7")
e("s_add_u32 s9, s9, s10")
e("s_add_u32 s40, s22, s9")
e("s_addc_u32 s41, s23, 0")
e("v_lshrrev_b32 v5, 3, v3")
e("v_and_b32 v6, 7, v3")
e("v_lshlrev_b32 v7, 13, v5")
e("v_lshl_add_u32 v7, v6, 4, v7")
for j in range(4):
    e("global_load_dwordx4 %s, v7, s[40:41] nt" % vr(vWq + 4 * j, 4))
    if j < 3:
        e("v_add_u32 v7, 0x40000, v7")
e("s_and_b32 s11, s2, 3")
e("s_bfe_u32 s12, s2, 0x10002")
e("s_lshr_b32 s13, s2, 3")
e("s_cmp_ge_u32 s2, 224")
e("s_cbranch_scc1 L_nogu0")
e("s_cmp_eq_u32 s12, 0")
e("s_cselect_b32 s42, s28, s30")
e("s_cselect_b32 s43, s29, s31")
e("s_mul_i32 s9, s11, %d" % (128 * 3584))
e("s_lshl_b32 s10, s13, 7")
e("s_add_u32 s9, s9, s10")
e("s_add_u32 s42, s42, s9")
e("s_addc_u32 s43, s43, 0")
e("s_movk_i32 s9, 3584")
e("v_mul_lo_u32 v7, v5, s9")
e("v_lshl_add_u32 v7, v6, 4, v7")
for j in range(4):
    e("global_load_dwordx4 %s, v7, s[42:43] nt" % vr(vGu + 4 * j, 4))
    if j < 3:
        e("v_add_u32 v7, %d, v7" % (32 * 3584))
lab("L_nogu0")
e("v_and_b32 v7, 3, v2")
e("s_lshl_b32 s9, s2, 2")
e("v_add_u32 v7, s9, v7")
e("v_lshlrev_b32 v%d, 1, v7" % vOut)
e("global_load_ushort v%d, v%d, s[16:17]" % (vXo, vOut))
e("s_barrier")
e("s_cmp_ge_u32 s2, 224")
e("s_cbranch_scc1 L_w5")
e("s_waitcnt vmcnt(9)")
e("s_branch L_wd")
lab("L_w5")
e("s_waitcnt vmcnt(5)")
lab("L_wd")
stamp(1)
for b in range(2):
    for d in range(4):
        src = vX + 4 * b + d
        e("v_lshlrev_b32 v%d, 16, v%d" % (vXN + (2 * d) * 2 + b, src))
        e("v_and_b32 v%d, 0xffff0000, v%d" % (vXN + (2 * d + 1) * 2 + b, src))
for b in range(2):
    s_ = vTT + b
    e("v_add_f32 v%d, v%d, v%d" % (s_, vXN + b, vXN + 2 + b))
    for i in range(2, 8):
        e("v_add_f32 v%d, v%d, v%d" % (s_, s_, vXN + 2 * i + b))
for b in range(2):
    red16("v_add_f32", vTT + b)
    red_rows("v_add_f32", vTT + b, vTT + 8)
    e("v_mul_f32 v%d, %s, v%d" % (vTT + b, f2h(1.0 / 512), vTT + b))
for b in range(2):
    s_ = vTT + 2 + b
    for i in range(8):
        e("v_sub_f32 v%d, v%d, v%d" % (vTT + 8, vXN + 2 * i + b, vTT + b))
        if i == 0:
            e("v_mul_f32 v%d, v%d, v%d" % (s_, vTT + 8, vTT + 8))
        else:
            e("v_fmac_f32 v%d, v%d, v%d" % (s_, vTT + 8, vTT + 8))
for b in range(2):
    red16("v_add_f32", vTT + 2 + b)
    red_rows("v_add_f32", vTT + 2 + b, vTT + 8)
    e("v_mul_f32 v%d, %s, v%d" % (vTT + 2 + b, f2h(1.0 / 512), vTT + 2 + b))
    rnd_bf16(vTT + b, vTT + b)
    rnd_bf16(vTT + 2 + b, vTT + 2 + b)
    e("v_add_f32 v%d, %s, v%d" % (vTT + 2 + b, EPS, vTT + 2 + b))
    rnd_bf16(vTT + 2 + b, vTT + 2 + b)
    e("v_sqrt_f32 v%d, v%d" % (vTT + 2 + b, vTT + 2 + b))
    e("s_nop 0")
    rnd_bf16(vTT + 2 + b, vTT + 2 + b)
    e("v_rcp_f32 v%d, v%d" % (vTT + 4 + b, vTT + 2 + b))
    e("s_nop 0")
for b in range(2):
    for i in range(8):
        x = vXN + 2 * i + b
        e("v_sub_f32 v%d, v%d, v%d" % (x, x, vTT + b))
        rnd_bf16(x, x)
        e("v_mul_f32 v%d, v%d, v%d" % (vTT + 8, x, vTT + 4 + b))
        e("v_fma_f32 v%d, -v%d, v%d, v%d" % (vTT + 9, vTT + 8, vTT + 2 + b, x))
        e("v_fma_f32 v%d, v%d, v%d, v%d" % (x, vTT + 9, vTT + 4 + b, vTT + 8))
        rnd_bf16(x, x)
e("v_lshlrev_b32 v7, 6, v2")
e("v_add_u32 v7, %d, v7" % L_XN)
for k in range(4):
    e("ds_write_b128 v7, %s offset:%d" % (vr(vXN + 4 * k, 4), 16 * k))
e("s_waitcnt lgkmcnt(0)")
e("s_lshl_b32 s9, s7, 10")
e("s_add_u32 s9, s9, %d" % L_XN)
e("v_lshlrev_b32 v7, 3, v5")
e("v_add_u32 v6, s9, v7")
for j in range(4):
    e("ds_read_b64 %s, v6 offset:%d" % (vr(vXr + 2 * j, 2), j * 256))
e("s_lshl_b32 s9, s11, 10")
e("s_add_u32 s9, s9, %d" % L_XN)
e("v_add_u32 v6, s9, v7")
for j in range(4):
    e("ds_read_b64 %s, v6 offset:%d" % (vr(vXr + 8 + 2 * j, 2), j * 256))
e("s_cmp_ge_u32 s2, 224")
e("s_cbranch_scc1 L_w1")
e("s_waitcnt vmcnt(5) lgkmcnt(0)")
e("s_branch L_w1d")
lab("L_w1")
e("s_waitcnt vmcnt(1) lgkmcnt(0)")
lab("L_w1d")
stamp(2)


def tile_fma(acc, wv, xr):
    for j in range(4):
        for d in range(4):
            src = wv + 4 * j + d
            e("v_lshlrev_b32 v%d, 16, v%d" % (vTT, src))
            e("v_and_b32 v%d, 0xffff0000, v%d" % (vTT + 1, src))
            for b in range(2):
                for h in range(2):
                    a_ = acc + b * 8 + 2 * d + h
                    if j == 0:
                        e("v_mul_f32 v%d, v%d, v%d" % (a_, xr + 2 * j + b, vTT + h))
                    else:
                        e("v_fmac_f32 v%d, v%d, v%d" % (a_, xr + 2 * j + b, vTT + h))


def red_write(acc, tl):
    e("s_nop 1")
    for k in range(16):
        e("v_add_f32_dpp v%d, v%d, v%d row_shr:8 row_mask:0xf bank_mask:0xf bound_ctrl:0" % (acc + k, acc + k, acc + k))
    e("v_lshrrev_b32 v6, 4, v2")
    e("s_lshl_b32 s9, s3, 2")
    e("v_add_u32 v6, s9, v6")
    e("v_lshlrev_b32 v6, 9, v6")
    e("v_and_b32 v7, 7, v2")
    e("v_lshl_add_u32 v6, v7, 5, v6")
    e("v_add_u32 v6, %d, v6" % L_RED)
    e("v_and_b32 v7, 8, v2")
    e("v_cmp_ne_u32 vcc, 0, v7")
    e("s_nop 1")
    e("s_and_saveexec_b64 s[48:49], vcc")
    for b in range(2):
        for h in range(2):
            e("ds_write_b128 v6, %s offset:%d" % (vr(acc + b * 8 + 4 * h, 4), tl * 8192 + b * 256 + h * 16))
    e("s_mov_b64 exec, s[48:49]")


tile_fma(aQ, vWq, vXr)
red_write(aQ, 0)
stamp(3)
signal(F_RED, vTT, vTT + 1)
wait_flag(F_NON, 1, vTT, vTT + 1)
e("v_mov_b32 v7, %d" % L_NONCE)
e("ds_read_b64 v[4:5], v7")
e("s_waitcnt lgkmcnt(0)")
e("v_readfirstlane_b32 s50, v4")
e("v_readfirstlane_b32 s51, v5")
e("s_cmp_eq_u32 s3, 0")
e("s_cbranch_scc0 L_notq")
e("s_lshl_b32 s9, s8, 2")
e("s_add_u32 s9, s9, s7")
e("s_lshl_b32 s9, s9, 13")
e("s_lshl_b32 s10, s6, 9")
e("s_add_u32 s9, s9, s10")
e("s_add_u32 s9, s9, %d" % W_QP)
e("v_lshrrev_b32 v6, 5, v2")
e("v_and_b32 v7, 31, v2")
e("v_lshlrev_b32 v6, 12, v6")
e("v_lshl_add_u32 v6, v7, 4, v6")
e("v_add_u32 v4, s9, v6")
e("v_lshlrev_b32 v6, 3, v2")
e("v_add_u32 v6, %d, v6" % L_RED)
wait_flag(F_RED, 4, vTT, vTT + 1)
stamp(4)
for gi in range(16):
    e("ds_read_b64 %s, v6 offset:%d" % (vr(aQ + 2 * gi, 2), gi * 512))
e("s_waitcnt lgkmcnt(0)")
e("v_add_f32 v%d, v%d, v%d" % (vG4, aQ, aQ + 2))
e("v_add_f32 v%d, v%d, v%d" % (vG4 + 1, aQ + 1, aQ + 3))
for gi in range(2, 16):
    e("v_add_f32 v%d, v%d, v%d" % (vG4, vG4, aQ + 2 * gi))
    e("v_add_f32 v%d, v%d, v%d" % (vG4 + 1, vG4 + 1, aQ + 2 * gi + 1))
e("v_mov_b32 v%d, s50" % (vG4 + 2))
e("v_mov_b32 v%d, s51" % (vG4 + 3))
e("global_store_dwordx4 v4, %s, s[38:39] sc1" % vr(vG4, 4))
stamp(5)
signal(F_PUB, vTT, vTT + 1)
lab("L_notq")
e("s_cmp_ge_u32 s2, 224")
e("s_cbranch_scc1 L_pubdone")
e("s_waitcnt vmcnt(1)")
tile_fma(aG, vGu, vXr + 8)
red_write(aG, 1)
signal(F_RG, vTT, vTT + 1)
e("s_cmp_eq_u32 s3, 1")
e("s_cbranch_scc0 L_pubdone")
e("s_lshl_b32 s9, s12, 2")
e("s_add_u32 s9, s9, s11")
e("s_mul_i32 s9, s9, 1792")
e("s_lshl_b32 s10, s13, 6")
e("s_add_u32 s9, s9, s10")
e("s_lshl_b32 s9, s9, 4")
e("s_add_u32 s9, s9, %d" % W_GU)
e("v_lshlrev_b32 v4, 4, v2")
e("v_add_u32 v4, s9, v4")
e("v_lshlrev_b32 v6, 2, v2")
e("v_add_u32 v6, %d, v6" % (L_RED + 8192))
wait_flag(F_RG, 4, vTT, vTT + 1)
for gi in range(16):
    e("ds_read_b32 v%d, v6 offset:%d" % (aQ + 2 * gi, gi * 512))
    e("ds_read_b32 v%d, v6 offset:%d" % (aQ + 2 * gi + 1, gi * 512 + 256))
e("s_waitcnt lgkmcnt(0)")
e("v_add_f32 v%d, v%d, v%d" % (vG4, aQ, aQ + 2))
e("v_add_f32 v%d, v%d, v%d" % (vG4 + 1, aQ + 1, aQ + 3))
for gi in range(2, 16):
    e("v_add_f32 v%d, v%d, v%d" % (vG4, vG4, aQ + 2 * gi))
    e("v_add_f32 v%d, v%d, v%d" % (vG4 + 1, vG4 + 1, aQ + 2 * gi + 1))
e("v_mov_b32 v%d, s50" % (vG4 + 2))
e("v_mov_b32 v%d, s51" % (vG4 + 3))
e("global_store_dwordx4 v4, %s, s[38:39] sc1" % vr(vG4, 4))
lab("L_pubdone")
vML = 56
vOr = 56
vGa = (16, 108)
e("s_lshr_b32 s14, s2, 3")
e("s_and_b32 s15, s2, 7")
e("v_lshrrev_b32 v5, 3, v3")
e("v_and_b32 v6, 7, v3")
e("v_lshlrev_b32 v4, 10, v5")
e("v_lshl_add_u32 v4, v6, 4, v4")
e("s_lshl_b32 s9, s14, 17")
e("s_lshl_b32 s10, s15, 7")
e("s_add_u32 s9, s9, s10")
e("s_add_u32 s46, s24, s9")
e("s_addc_u32 s47, s25, 0")
e("v_mov_b32 v7, v4")
for j in range(4):
    e("global_load_dwordx4 %s, v7, s[46:47] nt" % vr(vWo + 4 * j, 4))
    if j < 3:
        e("v_add_u32 v7, 0x8000, v7")
e("s_mul_i32 s9, s14, %d" % (56 * 1024))
e("s_add_u32 s9, s9, s10")
e("s_add_u32 s44, s32, s9")
e("s_addc_u32 s45, s33, 0")
e("global_load_dwordx4 %s, v4, s[44:45] nt" % vr(vWd, 4))
e("v_add_u32 v7, 0x8000, v4")
e("v_cmp_gt_u32 vcc, 24, v5")
e("s_nop 1")
e("v_cndmask_b32 v7, v4, v7, vcc")
e("global_load_dwordx4 %s, v7, s[44:45] nt" % vr(vWd + 4, 4))
e("v_lshrrev_b32 v6, 2, v3")
e("v_min_u32 v6, 55, v6")
e("v_and_b32 v7, 3, v3")
e("s_movk_i32 s9, 1792")
e("v_mul_lo_u32 v7, v7, s9")
e("v_add_u32 v7, v7, v6")
e("s_mul_i32 s9, s14, 56")
e("v_add_u32 v7, s9, v7")
e("v_lshlrev_b32 v7, 4, v7")
e("v_add_u32 v%d, %d, v7" % (vA, W_GU))
e("v_add_u32 v%d, %d, v7" % (vA + 1, W_GU + 4 * 1792 * 16))
poll(["global_load_dwordx4 %s, v%d, s[38:39] sc1" % (vr(vG4, 4), vA),
      "global_load_dwordx4 %s, v%d, s[38:39] sc1" % (vr(vG4 + 4, 4), vA + 1)], [vG4, vG4 + 4], vTT)
for qp in ("[1,0,3,2]", "[2,3,0,1]"):
    e("s_nop 1")
    for k in (0, 1, 4, 5):
        e("v_add_f32_dpp v%d, v%d, v%d quad_perm:%s row_mask:0xf bank_mask:0xf" % (vG4 + k, vG4 + k, vG4 + k, qp))
for k in (0, 1, 4, 5):
    rnd_bf16(vG4 + k, vG4 + k)
e("s_mov_b32 s47, %s" % LOG2E)
for k in range(2):
    e("v_mul_f32 v%d, -v%d, s47" % (vTT, vG4 + k))
    e("v_exp_f32 v%d, v%d" % (vTT, vTT))
    e("s_nop 0")
    e("v_add_f32 v%d, 1.0, v%d" % (vTT, vTT))
    e("v_rcp_f32 v%d, v%d" % (vTT, vTT))
    e("s_nop 0")
    e("v_mul_f32 v%d, v%d, v%d" % (vTT, vTT, vG4 + k))
    rnd_bf16(vTT, vTT)
    e("v_mul_f32 v%d, v%d, v%d" % (vTT, vTT, vG4 + 4 + k))
    rnd_bf16(vG4 + 8 + k, vTT)
e("v_lshlrev_b32 v6, 3, v6")
e("v_add_u32 v6, %d, v6" % L_HH)
e("ds_write_b64 v6, %s" % vr(vG4 + 8, 2))
signal(F_H, vTT, vTT + 1)
e("v_bfe_u32 v6, v2, 4, 1")
e("v_and_b32 v7, 15, v2")
e("v_lshlrev_b32 v6, 13, v6")
e("v_lshl_add_u32 v6, v7, 4, v6")
e("s_lshl_b32 s9, s14, 8")
e("s_add_u32 s9, s9, %d" % W_ML)
e("v_add_u32 v%d, s9, v6" % (vA + 2))
e("s_lshl_b32 s9, s14, 14")
e("s_lshl_b32 s10, s3, 12")
e("s_add_u32 s9, s9, s10")
e("s_add_u32 s9, s9, %d" % W_OP)
e("v_lshlrev_b32 v6, 4, v2")
e("v_add_u32 v%d, s9, v6" % vA)
e("v_add_u32 v%d, 0x80000, v%d" % (vA + 1, vA))
wait_flag(F_H, 4, vTT, vTT + 1)
e("v_lshlrev_b32 v6, 3, v5")
e("v_add_u32 v6, %d, v6" % L_HH)
e("ds_read_b64 %s, v6" % vr(vTT + 4, 2))
e("ds_read_b64 %s, v6 offset:256" % vr(vTT + 6, 2))
e("s_waitcnt lgkmcnt(0)")
e("v_cmp_gt_u32 vcc, 24, v5")
e("s_nop 1")
e("v_cndmask_b32 v%d, 0, v%d, vcc" % (vTT + 6, vTT + 6))
e("v_cndmask_b32 v%d, 0, v%d, vcc" % (vTT + 7, vTT + 7))
e("s_waitcnt vmcnt(0)")
for j in range(2):
    for d in range(4):
        src = vWd + 4 * j + d
        e("v_lshlrev_b32 v%d, 16, v%d" % (vTT, src))
        e("v_and_b32 v%d, 0xffff0000, v%d" % (vTT + 1, src))
        for b_ in range(2):
            for h in range(2):
                a_ = aG + b_ * 8 + 2 * d + h
                if j == 0:
                    e("v_mul_f32 v%d, v%d, v%d" % (a_, vTT + 4 + 2 * j + b_, vTT + h))
                else:
                    e("v_fmac_f32 v%d, v%d, v%d" % (a_, vTT + 4 + 2 * j + b_, vTT + h))
red_write(aG, 1)
signal(F_RB, vTT, vTT + 1)
vBs = 126
e("s_cmp_ge_u32 s3, 2")
e("s_cbranch_scc1 L_nobs")
e("v_lshlrev_b32 v6, 2, v3")
e("v_add_u32 v6, %d, v6" % (L_RED + 8192))
wait_flag(F_RB, 4, vTT, vTT + 1)
for gi in range(16):
    e("ds_read_b32 v%d, v6 offset:%d" % (aG + gi, gi * 512))
e("s_waitcnt lgkmcnt(0)")
e("v_add_f32 v%d, v%d, v%d" % (vBs, aG, aG + 1))
for gi in range(2, 16):
    e("v_add_f32 v%d, v%d, v%d" % (vBs, vBs, aG + gi))
lab("L_nobs")
vWu = (80, 88, 32, 40)
for j in range(2):
    for d in range(4):
        e("v_lshlrev_b32 v%d, 16, v%d" % (vWu[j] + 2 * d, vWo + 4 * j + d))
        e("v_and_b32 v%d, 0xffff0000, v%d" % (vWu[j] + 2 * d + 1, vWo + 4 * j + d))
for k in range(8):
    e("v_mov_b32 v%d, v%d" % (vTT + k, vWo + 8 + k))
for j in range(2, 4):
    for d in range(4):
        e("v_lshlrev_b32 v%d, 16, v%d" % (vWu[j] + 2 * d, vTT + 4 * (j - 2) + d))
        e("v_and_b32 v%d, 0xffff0000, v%d" % (vWu[j] + 2 * d + 1, vTT + 4 * (j - 2) + d))
stamp(6)
stamp(7)
wait_flag(F_AP, 8, vTT, vTT + 1)
lds = ["global_load_dwordx4 %s, v%d, s[38:39] sc1" % (vr(vML, 4), vA + 2)]
gr = [vML]
for b_ in range(2):
    for i in range(4):
        lds.append("global_load_dwordx4 %s, v%d, s[38:39] offset:%d sc1" % (vr(vGa[b_] + 4 * i, 4), vA + b_, 1024 * i))
        gr.append(vGa[b_] + 4 * i)
poll(lds, gr, vTT, sleep=int(OPT.get("S3", 1)))
stamp(8)
if STAMP:
    e("s_mov_b32 s85, s60")
e("v_mov_b32 v%d, v%d" % (vTT + 2, vML))
red16("v_max_f32", vTT + 2)
e("v_sub_f32 v%d, v%d, v%d" % (vTT + 3, vML, vTT + 2))
e("v_mul_f32 v%d, s47, v%d" % (vTT + 3, vTT + 3))
e("v_exp_f32 v%d, v%d" % (vTT + 3, vTT + 3))
e("s_lshl_b32 s9, s3, 2")
e("v_mul_f32 v%d, v%d, v%d" % (vTT + 4, vML + 1, vTT + 3))
red16("v_add_f32", vTT + 4)
e("v_rcp_f32 v%d, v%d" % (vTT + 4, vTT + 4))
for b_ in range(2):
    for i in range(4):
        e("s_add_u32 s10, s9, %d" % (b_ * 16 + i))
        e("s_nop 0")
        e("v_readlane_b32 s%d, v%d, s10" % (52 + b_ * 4 + i, vTT + 3))
e("v_readlane_b32 s62, v%d, 0" % (vTT + 4))
e("v_readlane_b32 s63, v%d, 16" % (vTT + 4))
e("s_nop 1")
for b_ in range(2):
    for k in range(2):
        dst = vTT + 4 + 2 * k + b_
        e("v_mul_f32 v%d, s%d, v%d" % (dst, 52 + b_ * 4, vGa[b_] + k))
        for i in range(1, 4):
            e("v_fmac_f32 v%d, s%d, v%d" % (dst, 52 + b_ * 4 + i, vGa[b_] + 4 * i + k))
e("s_lshl_b32 s9, s3, 10")
e("s_add_u32 s9, s9, %d" % L_OC)
e("v_lshlrev_b32 v6, 4, v2")
e("v_add_u32 v6, s9, v6")
e("ds_write_b128 v6, %s" % vr(vTT + 4, 4))
signal(F_OC, vTT, vTT + 1)
e("v_lshlrev_b32 v6, 3, v5")
e("v_add_u32 v6, %d, v6" % L_OC)
wait_flag(F_OC, 4, vTT, vTT + 1)
for j in range(4):
    for cc in range(4):
        e("ds_read_b64 %s, v6 offset:%d" % (vr(vGa[j >> 1] + (j & 1) * 8 + 2 * cc, 2), cc * 1024 + j * 256))
e("s_waitcnt lgkmcnt(0)")
for j in range(4):
    base = vGa[j >> 1] + (j & 1) * 8
    for b_ in range(2):
        o = vOr + 2 * j + b_
        e("v_add_f32 v%d, v%d, v%d" % (o, base + b_, base + 2 + b_))
        e("v_add_f32 v%d, v%d, v%d" % (vTT, base + 4 + b_, base + 6 + b_))
        e("v_add_f32 v%d, v%d, v%d" % (o, o, vTT))
        e("v_mul_f32 v%d, s%d, v%d" % (o, 62 + b_, o))
        rnd_bf16(o, o)
for j in range(4):
    for b_ in range(2):
        for p in range(4):
            a_ = aQ + b_ * 8 + 2 * p
            src2 = "0" if j == 0 else vr(a_, 2)
            if j == 0:
                e("v_pk_mul_f32 %s, %s, %s op_sel:[0,%d] op_sel_hi:[1,%d]" % (vr(a_, 2), vr(vWu[j] + 2 * p, 2), vr(vOr + 2 * j, 2), b_, b_))
            else:
                e("v_pk_fma_f32 %s, %s, %s, %s op_sel:[0,%d,0] op_sel_hi:[1,%d,1]" % (vr(a_, 2), vr(vWu[j] + 2 * p, 2), vr(vOr + 2 * j, 2), vr(a_, 2), b_, b_))
red_write(aQ, 0)
signal(F_R2, vTT, vTT + 1)
e("s_cmp_ge_u32 s3, 2")
e("s_cbranch_scc1 L_cend")
e("v_lshlrev_b32 v6, 2, v3")
e("v_add_u32 v6, %d, v6" % L_RED)
e("s_mul_i32 s9, s2, %d" % FPS)
e("s_add_u32 s9, s9, %d" % W_FP)
e("v_lshlrev_b32 v4, 4, v3")
e("v_add_u32 v4, s9, v4")
wait_flag(F_R2, 4, vTT, vTT + 1)
stamp(9)
for gi in range(16):
    e("ds_read_b32 v%d, v6 offset:%d" % (16 + gi, gi * 512))
e("v_mov_b32 v%d, v%d" % (vG4 + 1, vBs))
e("s_waitcnt lgkmcnt(0)")
for st_ in (8, 4, 2, 1):
    for k in range(st_):
        e("v_add_f32 v%d, v%d, v%d" % (16 + k, 16 + k, 16 + k + st_))
e("v_mov_b32 v%d, v16" % vG4)
e("v_mov_b32 v%d, s50" % (vG4 + 2))
e("v_mov_b32 v%d, s51" % (vG4 + 3))
e("global_store_dwordx4 v4, %s, s[38:39] sc1" % vr(vG4, 4))
e("s_cmp_eq_u32 s3, 0")
e("s_cbranch_scc0 L_cend")
e("s_lshl_b32 s9, s2, 2")
e("s_and_b32 s9, s9, 511")
e("s_lshr_b32 s10, s9, 6")
e("s_and_b32 s9, s9, 63")
e("s_lshr_b32 s11, s2, 7")
e("s_lshl_b32 s11, s11, 6")
e("s_add_u32 s9, s9, s11")
e("s_lshl_b32 s9, s9, 4")
e("s_mul_i32 s10, s10, %d" % FPS)
e("s_add_u32 s9, s9, s10")
e("s_add_u32 s9, s9, %d" % W_FP)
e("v_lshrrev_b32 v5, 2, v2")
e("v_and_b32 v7, 3, v2")
e("s_movk_i32 s10, %d" % (8 * FPS))
e("v_mul_lo_u32 v5, v5, s10")
e("v_lshl_add_u32 v5, v7, 4, v5")
e("v_add_u32 v%d, s9, v5" % vA)
e("v_add_u32 v%d, %d, v%d" % (vA + 1, 128 * FPS, vA))
poll(["global_load_dwordx4 %s, v%d, s[38:39] sc1" % (vr(16 + 4 * k, 4), vA + k) for k in range(2)],
     [16, 20], vTT, sleep=int(OPT.get("S4", 1)))
stamp(10)
if STAMP:
    e("s_mov_b32 s84, s60")
e("v_add_f32 v%d, v16, v20" % vG4)
e("v_add_f32 v%d, v17, v21" % (vG4 + 1))
for n in (8, 4):
    e("s_nop 1")
    for k in range(2):
        e("v_add_f32_dpp v%d, v%d, v%d row_ror:%d row_mask:0xf bank_mask:0xf" % (vG4 + k, vG4 + k, vG4 + k, n))
for k in range(2):
    red_rows("v_add_f32", vG4 + k, vTT)
rnd_bf16(vG4, vG4)
rnd_bf16(vG4 + 1, vG4 + 1)
e("v_lshlrev_b32 v%d, 16, v%d" % (vXo, vXo))
e("v_add_f32 v%d, v%d, v%d" % (vG4, vXo, vG4))
rnd_bf16(vG4, vG4)
e("v_add_f32 v%d, v%d, v%d" % (vG4, vG4, vG4 + 1))
e("v_cvt_pk_bf16_f32 v%d, v%d, v%d" % (vG4, vG4, vG4))
e("s_mov_b64 exec, 15")
e("global_store_short v%d, v%d, s[34:35]" % (vOut, vG4))
e("s_mov_b64 exec, -1")
stamp(11)
lab("L_cend")
stamp_flush(14, 64)
lab("L_end")
e("s_endpgm")

out.append(""".section .rodata,"a"
.p2align 6
.amdhsa_kernel %s_kernel
  .amdhsa_next_free_vgpr %d
  .amdhsa_next_free_sgpr 96
  .amdhsa_accum_offset %d
  .amdhsa_group_segment_fixed_size 0
  .amdhsa_kernarg_size 96
  .amdhsa_user_sgpr_count 2
  .amdhsa_user_sgpr_kernarg_segment_ptr 1
  .amdhsa_system_sgpr_workgroup_id_x 1
.end_amdhsa_kernel""" % (NAME, NV, NV))

open(sys.argv[1], "w").write("\n".join(out) + "\n")
```

```python
import struct
import sys

NAME = "parallel_sum__sliding_block_cached__swiglu_ffn__decode"
STAMP = len(sys.argv) > 2 and sys.argv[2] == "stamp"
OPT = dict(a.split("=") for a in sys.argv[3:])


def f2h(x):
    return "0x%08x" % struct.unpack("<I", struct.pack("<f", x))[0]


LOG2E = f2h(1.4426950408889634)
SCALE = f2h(128 ** -0.5)
EPS = f2h(1e-5)

L_K = 0
L_V = 65536
L_XN = 131072
L_RED = 135168
L_Q = 151552
L_MW = 152576
L_NONCE = 152832
L_FIN = 152848
L_FLG = 152976
L_HH = 153040
L_OC = L_XN
LDS_BYTES = 153600
F_RED, F_Q, F_OW, F_R2, F_H, F_NON, F_PUB, F_OC, F_AP, F_RG, F_M, F_RB, F_VL = range(13)

W_QP = 0x0
W_GU = 0x40000
W_ML = 0x80000
W_OP = 0x100000
W_FP = 0x200000
FPS = 2048 + 64
W_ST = 0x1000000

SPIN_LIMIT = 200000
TH = int(OPT.get("TH", 2))
VQ = int(OPT.get("VQ", 3))
NV = 128

out = []
_pl = [0]


def e(s=""):
    out.append("    " + s)


def lab(s):
    out.append(s + ":")


def vr(b, n):
    return "v[%d:%d]" % (b, b + n - 1)


def stamp(idx):
    if not STAMP:
        return
    e("s_memrealtime s[70:71]")
    e("s_waitcnt lgkmcnt(0)")
    e("s_mov_b32 s%d, s70" % (72 + idx))


def stamp_flush(n, base):
    if not STAMP:
        return
    if OPT.get("DBG", "0") == "1":
        role = 0 if n == 9 else 1
        sel = (1, 2, 5, 8) if role == 0 else (2, 5, 6, 8, 9, 11)
        if role == 1:
            e("s_cmp_lg_u32 s3, 0")
            e("s_cbranch_scc1 L_end")
        for k, i in enumerate(sel):
            e("s_sub_u32 s70, s%d, s50" % (72 + i))
            e("v_mov_b32 v%d, s70" % base)
            e("v_mov_b32 v%d, %d" % (base + 1, 8 + 4 * (role * 4 + k)))
            e("s_mov_b64 exec, 1")
            e("global_atomic_umax v%d, v%d, s[36:37] sc1" % (base + 1, base))
            e("s_mov_b64 exec, -1")
        return
    for i in range(n):
        e("v_mov_b32 v%d, s%d" % (base + i, 72 + i))
    for i in range(n, 16):
        e("v_mov_b32 v%d, 0" % (base + i))
    a = base + 16
    e("v_lshrrev_b32 v%d, 6, v0" % a)
    e("s_lshl_b32 s70, s2, 4")
    e("v_add_u32 v%d, s70, v%d" % (a, a))
    e("v_lshlrev_b32 v%d, 6, v%d" % (a, a))
    e("v_add_u32 v%d, %d, v%d" % (a, W_ST, a))
    e("s_mov_b64 exec, 1")
    for k in range(4):
        e("global_store_dwordx4 v%d, %s, s[38:39] offset:%d" % (a, vr(base + 4 * k, 4), 16 * k))
    e("s_mov_b64 exec, -1")


def rnd_bf16(dst, src):
    e("v_cvt_pk_bf16_f32 v%d, v%d, v%d" % (dst, src, src))
    e("v_lshlrev_b32 v%d, 16, v%d" % (dst, dst))


def red16(op, v):
    for n in (8, 4, 2, 1):
        e("s_nop 1")
        e("%s_dpp v%d, v%d, v%d row_ror:%d row_mask:0xf bank_mask:0xf" % (op, v, v, v, n))


def red_half(op, v, t):
    e("v_mov_b32 v%d, v%d" % (t, v))
    e("s_nop 1")
    e("v_permlane32_swap_b32 v%d, v%d" % (v, t))
    e("s_nop 1")
    e("%s v%d, v%d, v%d" % (op, v, v, t))


def red_rows(op, v, t):
    e("v_mov_b32 v%d, v%d" % (t, v))
    e("s_nop 1")
    e("v_permlane16_swap_b32 v%d, v%d" % (v, t))
    e("s_nop 1")
    e("%s v%d, v%d, v%d" % (op, v, v, t))
    red_half(op, v, t)


def tagcheck(grans, tmp):
    first = True
    for g in grans:
        if first:
            e("v_xor_b32 v%d, s50, v%d" % (tmp, g + 2))
            first = False
        else:
            e("v_xor_b32 v%d, s50, v%d" % (tmp + 1, g + 2))
            e("v_or_b32 v%d, v%d, v%d" % (tmp, tmp, tmp + 1))
        e("v_xor_b32 v%d, s51, v%d" % (tmp + 1, g + 3))
        e("v_or_b32 v%d, v%d, v%d" % (tmp, tmp, tmp + 1))
    e("v_cmp_ne_u32 vcc, 0, v%d" % tmp)
    e("s_nop 1")
    e("s_and_b64 exec, exec, vcc")


def poll(loads, grans, tmp, sleep=1):
    _pl[0] += 1
    L = "L_poll%d" % _pl[0]
    D = "L_polld%d" % _pl[0]
    e("s_mov_b32 s60, 0")
    lab(L)
    for l in loads:
        e(l)
    e("s_waitcnt vmcnt(0)")
    tagcheck(grans, tmp)
    e("s_cbranch_scc0 %s" % D)
    e("s_add_u32 s60, s60, 1")
    e("s_cmp_lt_u32 s60, %d" % SPIN_LIMIT)
    if sleep:
        e("s_sleep %d" % sleep)
    e("s_cbranch_scc1 %s" % L)
    lab(D)
    e("s_mov_b64 exec, -1")


def signal(flag, va, vb):
    e("s_waitcnt lgkmcnt(0)")
    e("v_mov_b32 v%d, %d" % (va, L_FLG + 4 * flag))
    e("v_mov_b32 v%d, 1" % vb)
    e("s_mov_b64 exec, 1")
    e("ds_add_u32 v%d, v%d" % (va, vb))
    e("s_mov_b64 exec, -1")


def wait_flag(flag, target, va, vb):
    _pl[0] += 1
    L = "L_wf%d" % _pl[0]
    e("v_mov_b32 v%d, %d" % (va, L_FLG + 4 * flag))
    lab(L)
    e("ds_read_b32 v%d, v%d" % (vb, va))
    e("s_waitcnt lgkmcnt(0)")
    e("v_readfirstlane_b32 s61, v%d" % vb)
    e("s_nop 3")
    e("s_cmp_ge_u32 s61, %d" % target)
    e("s_cbranch_scc0 %s" % L)


header = """; Kernarg layout for this problem (96 bytes, ptrs only, base s[0:1]):
;   offset   0: d_in[0] A_x  shape=(2, 1, 512) dtype=bfloat16 strides=(1024, 1024, 2) contiguous=True
;   offset   8: d_in[1] A_k_cache  shape=(2, 8, 32768, 128) dtype=bfloat16 strides=(67108864, 8388608, 256, 2) contiguous=True
;   offset  16: d_in[2] A_v_cache  shape=(2, 8, 32768, 128) dtype=bfloat16 strides=(67108864, 8388608, 256, 2) contiguous=True
;   offset  24: d_in[3] A_wq  shape=(512, 4096) dtype=bfloat16 strides=(8192, 2) contiguous=True
;   offset  32: d_in[4] A_wo  shape=(4096, 512) dtype=bfloat16 strides=(1024, 2) contiguous=True
;   offset  40: d_in[5] B_x  shape=(2, 1, 512) dtype=bfloat16 strides=(1024, 1024, 2) contiguous=True
;   offset  48: d_in[6] B_w_gate  shape=(512, 1792) dtype=bfloat16 strides=(3584, 2) contiguous=True
;   offset  56: d_in[7] B_w_up  shape=(512, 1792) dtype=bfloat16 strides=(3584, 2) contiguous=True
;   offset  64: d_in[8] B_w_down  shape=(1792, 512) dtype=bfloat16 strides=(1024, 2) contiguous=True
;   offset  72: d_out     shape=(2, 1, 512) dtype=bfloat16 (2 bytes/elem)
;   offset  80: d_debug   256 bytes
;   offset  88: d_ws      536870912 bytes workspace (unspecified values whenever your kernel or launch list starts; a list's later launches find what earlier ones wrote)
; Override launch geometry by editing the next line (default: block=256,
; grid=ceil(out_elems/256), lds=0). Harness parses it; keep it on one line.
; @launch grid=(256,1,1) block=(832,1,1) lds=%d
.amdgcn_target "amdgcn-amd-amdhsa--gfx950"
.text
.globl %s_kernel
.p2align 8
.type %s_kernel,@function
%s_kernel:""" % (LDS_BYTES, NAME, NAME, NAME)
out.append(header)

e("s_cmp_ge_u32 s2, 256")
e("s_cbranch_scc1 L_end")
e("s_load_dwordx16 s[16:31], s[0:1], 0")
e("s_load_dwordx8 s[32:39], s[0:1], 64")
e("v_lshrrev_b32 v1, 6, v0")
e("v_and_b32 v2, 63, v0")
e("s_nop 0")
e("v_readfirstlane_b32 s3, v1")
e("s_lshr_b32 s4, s2, 4")
e("s_and_b32 s5, s2, 15")
e("s_waitcnt lgkmcnt(0)")
e("s_cmp_eq_u32 s3, 12")
e("s_cbranch_scc1 L_nonce")
e("s_cmp_ge_u32 s3, 8")
e("s_cbranch_scc1 L_comm")

vKpat, vVpat = 8, 12
vT = 8
vQ = 16
vKaddr = 32
vVaddr = 36
vS = 44
vP = 52
vQA = 56
vNon = 58
vM, vL = 60, 61
vO = 64
vFrag = 96
vQT = vO

stamp(0)
e("s_lshl_b32 s6, s4, 23")
e("s_lshl_b32 s7, s5, 16")
e("s_add_u32 s6, s6, s7")
e("s_lshl_b32 s44, s3, 13")
e("s_add_u32 s6, s6, s44")
e("s_add_u32 s6, s6, %d" % (28672 * 256))
e("s_add_u32 s40, s18, s6")
e("s_addc_u32 s41, s19, 0")
e("s_add_u32 s42, s20, s6")
e("s_addc_u32 s43, s21, 0")
e("v_lshrrev_b32 v3, 4, v2")
e("v_and_b32 v4, 15, v2")
e("v_lshlrev_b32 v5, 8, v3")
for j in range(4):
    e("v_add_u32 v6, %d, v3" % (4 * j))
    e("v_xor_b32 v7, v6, v4")
    e("v_lshl_add_u32 v%d, v7, 4, v5" % (vKpat + j))
    e("v_and_b32 v6, 7, v6")
    e("v_lshlrev_b32 v6, 1, v6")
    e("v_xor_b32 v7, v6, v4")
    e("v_lshl_add_u32 v%d, v7, 4, v5" % (vVpat + j))
e("v_lshlrev_b32 v5, 8, v4")
e("v_add_u32 v5, s44, v5")
for kk in range(4):
    e("v_add_u32 v6, %d, v3" % (kk * 4))
    e("v_xor_b32 v6, v6, v4")
    e("v_lshl_add_u32 v%d, v6, 4, v5" % (vKaddr + kk))
e("v_lshrrev_b32 v6, 2, v2")
e("v_and_b32 v7, 3, v2")
e("v_lshlrev_b32 v5, 8, v6")
e("v_lshl_add_u32 v5, v7, 3, v5")
e("v_add_u32 v5, s44, v5")
e("v_add_u32 v5, %d, v5" % L_V)
e("v_and_b32 v6, 7, v6")
for dt in range(8):
    e("v_xor_b32 v7, %d, v6" % dt)
    e("v_lshl_add_u32 v%d, v7, 5, v5" % (vVaddr + dt))
e("v_and_b32 v1, 3, v2")
e("v_lshlrev_b32 v1, 8, v1")
e("v_lshl_add_u32 v1, v3, 4, v1")
e("v_add_u32 v1, %d, v1" % L_Q)
e("s_and_b32 s6, s4, 7")
e("s_lshl_b32 s6, s6, 15")
e("s_lshr_b32 s7, s2, 7")
e("s_lshl_b32 s7, s7, 12")
e("s_add_u32 s6, s6, s7")
e("s_lshl_b32 s7, s3, 9")
e("s_add_u32 s6, s6, s7")
e("s_add_u32 s6, s6, %d" % W_QP)
e("v_and_b32 v5, 31, v2")
e("v_lshrrev_b32 v6, 5, v2")
e("v_lshlrev_b32 v6, 14, v6")
e("v_lshl_add_u32 v5, v5, 4, v6")
e("v_add_u32 v%d, s6, v5" % vQA)
e("v_add_u32 v%d, 0x2000, v%d" % (vQA + 1, vQA))
e("s_barrier")
if OPT.get("KN", "0") == "1":
    wait_flag(F_NON, 1, 6, 7)
npiece = 0
for base_l, sb, pat in ((L_K, 40, vKpat), (L_V, 42, vVpat)):
    for grp in range(2):
        e("s_add_u32 s45, s44, %d" % (base_l + grp * 4096))
        e("s_mov_b32 m0, s45")
        e("s_nop 0")
        for j in range(4):
            if npiece == int(OPT.get("GATE", 8)):
                wait_flag(F_PUB, 1, 6, 7)
            if npiece == 8 + VQ:
                for k in range(2):
                    e("global_load_dwordx4 %s, v%d, s[38:39] sc1" % (vr(vS + 4 * k, 4), vQA + k))
            e("global_load_lds_dwordx4 v%d, s[%d:%d] offset:%d nt" % (pat + j, sb, sb + 1, j * 1024))
            npiece += 1
        e("s_add_u32 s%d, s%d, 4096" % (sb, sb))
        e("s_addc_u32 s%d, s%d, 0" % (sb + 1, sb + 1))
stamp(1)
e("v_mov_b32 v7, %d" % L_NONCE)
e("ds_read_b64 %s, v7" % vr(vNon, 2))
e("s_waitcnt lgkmcnt(0)")
e("v_readfirstlane_b32 s50, v%d" % vNon)
e("v_readfirstlane_b32 s51, v%d" % (vNon + 1))
e("s_waitcnt vmcnt(%d)" % (8 - VQ))
tagcheck([vS, vS + 4], vT)
e("s_cbranch_scc0 L_qok")
poll(["global_load_dwordx4 %s, v%d, s[38:39] sc1" % (vr(vS + 4 * k, 4), vQA + k) for k in range(2)],
     [vS, vS + 4], vT)
lab("L_qok")
e("s_mov_b64 exec, -1")
e("v_add_f32 v%d, v%d, v%d" % (vS, vS, vS + 4))
e("v_add_f32 v%d, v%d, v%d" % (vS + 1, vS + 1, vS + 5))
red_half("v_add_f32", vS, vT)
red_half("v_add_f32", vS + 1, vT)
e("v_cvt_pk_bf16_f32 v%d, v%d, v%d" % (vS, vS, vS + 1))
e("s_lshl_b32 s6, s3, 7")
e("s_add_u32 s6, s6, %d" % L_Q)
e("v_and_b32 v6, 31, v2")
e("v_lshlrev_b32 v6, 2, v6")
e("v_add_u32 v6, s6, v6")
e("ds_write_b32 v6, v%d" % vS)
signal(F_Q, vT, vT + 1)
wait_flag(F_Q, 8, vT, vT + 1)
stamp(2)
for kk in range(4):
    e("ds_read_b128 %s, v1 offset:%d" % (vr(vQ + kk * 4, 4), kk * 64))
for t in range(2):
    for kk in range(4):
        e("ds_read_b128 %s, v%d offset:%d" % (vr(vFrag + (t * 4 + kk) * 4, 4), vKaddr + kk, t * 4096))
e("s_mov_b32 s46, %s" % SCALE)
e("s_mov_b32 s47, %s" % LOG2E)
e("s_waitcnt lgkmcnt(0)")
for t in range(2):
    for kk in range(4):
        c = "0" if kk == 0 else vr(vS + t * 4, 4)
        e("v_mfma_f32_16x16x32_bf16 %s, %s, %s, %s" % (vr(vS + t * 4, 4), vr(vFrag + (t * 4 + kk) * 4, 4), vr(vQ + kk * 4, 4), c))
e("s_nop 7")
e("s_nop 3")
for k in range(4):
    a, b2 = vS + 2 * k, vS + 2 * k + 1
    e("v_cvt_pk_bf16_f32 v%d, v%d, v%d" % (vQT, a, b2))
    e("v_lshlrev_b32 v%d, 16, v%d" % (a, vQT))
    e("v_and_b32 v%d, 0xffff0000, v%d" % (b2, vQT))
    e("v_mul_f32 v%d, s46, v%d" % (a, a))
    e("v_mul_f32 v%d, s46, v%d" % (b2, b2))
    e("v_cvt_pk_bf16_f32 v%d, v%d, v%d" % (vQT, a, b2))
    e("v_lshlrev_b32 v%d, 16, v%d" % (a, vQT))
    e("v_and_b32 v%d, 0xffff0000, v%d" % (b2, vQT))
e("v_max3_f32 v%d, v%d, v%d, v%d" % (vM, vS, vS + 1, vS + 2))
for k in range(3, 7, 2):
    e("v_max3_f32 v%d, v%d, v%d, v%d" % (vM, vM, vS + k, vS + k + 1))
e("v_max_f32 v%d, v%d, v%d" % (vM, vM, vS + 7))
red_rows("v_max_f32", vM, vQT)
e("s_lshl_b32 s45, s3, 4")
e("v_lshlrev_b32 v6, 2, v2")
e("v_add_u32 v6, s45, v6")
e("v_add_u32 v6, %d, v6" % L_MW)
e("s_mov_b64 exec, 15")
e("ds_write_b32 v6, v%d" % vM)
e("s_mov_b64 exec, -1")
signal(F_M, vQT, vQT + 1)
e("v_and_b32 v6, 3, v2")
e("v_lshlrev_b32 v6, 2, v6")
e("v_add_u32 v6, %d, v6" % L_MW)
wait_flag(F_M, 8, vQT, vQT + 1)
for k in range(8):
    e("ds_read_b32 v%d, v6 offset:%d" % (vQT + k, k * 16))
e("s_waitcnt lgkmcnt(0)")
e("v_max3_f32 v%d, v%d, v%d, v%d" % (vM, vQT, vQT + 1, vQT + 2))
e("v_max3_f32 v%d, v%d, v%d, v%d" % (vM, vM, vQT + 3, vQT + 4))
e("v_max3_f32 v%d, v%d, v%d, v%d" % (vM, vM, vQT + 5, vQT + 6))
e("v_max_f32 v%d, v%d, v%d" % (vM, vM, vQT + 7))
for k in range(8):
    e("v_sub_f32 v%d, v%d, v%d" % (vS + k, vS + k, vM))
    e("v_mul_f32 v%d, s47, v%d" % (vS + k, vS + k))
    e("v_exp_f32 v%d, v%d" % (vS + k, vS + k))
e("s_nop 0")
e("v_add_f32 v%d, v%d, v%d" % (vL, vS, vS + 1))
for k in range(2, 8):
    e("v_add_f32 v%d, v%d, v%d" % (vL, vL, vS + k))
for k in range(4):
    e("v_cvt_pk_bf16_f32 v%d, v%d, v%d" % (vP + k, vS + 2 * k, vS + 2 * k + 1))
red_rows("v_add_f32", vL, vQT)
e("v_lshlrev_b32 v5, 9, v4")
e("v_lshl_add_u32 v5, v3, 4, v5")
e("v_add_u32 v5, s44, v5")
e("s_lshl_b32 s45, s3, 4")
e("v_lshlrev_b32 v6, 2, v2")
e("v_add_u32 v6, s45, v6")
e("v_add_u32 v6, %d, v6" % (L_MW + 128))
e("s_mov_b64 exec, 15")
e("ds_write_b32 v6, v%d" % vL)
e("s_mov_b64 exec, -1")
stamp(4)
e("s_waitcnt vmcnt(0)")
stamp(5)
if OPT.get("WL", "0") == "1":
    signal(F_VL, vT, vT + 1)
for dt in range(8):
    base = vFrag + dt * 4
    e("ds_read_b64_tr_b16 %s, v%d" % (vr(base, 2), vVaddr + dt))
    e("ds_read_b64_tr_b16 %s, v%d offset:4096" % (vr(base + 2, 2), vVaddr + dt))
for dt in range(8):
    e("s_waitcnt lgkmcnt(%d)" % (14 - 2 * dt))
    e("v_mfma_f32_16x16x32_bf16 %s, %s, %s, 0" % (vr(vO + dt * 4, 4), vr(vFrag + dt * 4, 4), vr(vP, 4)))
e("v_cmp_gt_u32 vcc, 4, v4")
e("s_nop 7")
e("s_and_saveexec_b64 s[48:49], vcc")
for dt in range(8):
    e("ds_write_b128 v5, %s offset:%d" % (vr(vO + dt * 4, 4), dt * 64))
e("s_mov_b64 exec, s[48:49]")
stamp(6)
signal(F_OW, vT, vT + 1)
e("s_lshr_b32 s6, s3, 1")
e("s_and_b32 s7, s3, 1")
e("s_lshl_b32 s8, s6, 9")
e("s_lshl_b32 s9, s7, 8")
e("s_add_u32 s8, s8, s9")
e("v_and_b32 v5, 31, v2")
e("v_lshrrev_b32 v6, 5, v2")
e("v_lshlrev_b32 v6, 15, v6")
e("v_lshl_add_u32 v5, v5, 3, v6")
e("v_add_u32 v5, s8, v5")
e("s_lshl_b32 s9, s6, 2")
e("s_add_u32 s9, s9, %d" % (L_MW + 128))
e("v_mov_b32 v6, s9")
e("v_readlane_b32 s11, v%d, s6" % vM)
wait_flag(F_OW, 8, vT, vT + 1)
stamp(7)
for k in range(4):
    e("ds_read_b64 %s, v5 offset:%d" % (vr(vFrag + 2 * k, 2), k * 8192))
for k in range(8):
    e("ds_read_b32 v%d, v6 offset:%d" % (vFrag + 8 + k, k * 16))
e("s_waitcnt lgkmcnt(0)")
G = vT
e("v_add_f32 v%d, v%d, v%d" % (G, vFrag, vFrag + 2))
e("v_add_f32 v%d, v%d, v%d" % (G + 2, vFrag + 4, vFrag + 6))
e("v_add_f32 v%d, v%d, v%d" % (G + 1, vFrag + 1, vFrag + 3))
e("v_add_f32 v%d, v%d, v%d" % (G + 3, vFrag + 5, vFrag + 7))
e("v_add_f32 v%d, v%d, v%d" % (G, G, G + 2))
e("v_add_f32 v%d, v%d, v%d" % (G + 1, G + 1, G + 3))
e("v_add_f32 v%d, v%d, v%d" % (G + 5, vFrag + 8, vFrag + 9))
for k in range(2, 8):
    e("v_add_f32 v%d, v%d, v%d" % (G + 5, G + 5, vFrag + 8 + k))
red_half("v_add_f32", G, G + 2)
red_half("v_add_f32", G + 1, G + 2)
e("v_mov_b32 v%d, s50" % (G + 2))
e("v_mov_b32 v%d, s51" % (G + 3))
e("v_mov_b32 v%d, s11" % (G + 4))
e("v_mov_b32 v%d, s50" % (G + 6))
e("v_mov_b32 v%d, s51" % (G + 7))
e("s_lshl_b32 s8, s4, 2")
e("s_add_u32 s8, s8, s6")
e("s_lshl_b32 s9, s8, 14")
e("s_lshl_b32 s10, s5, 10")
e("s_add_u32 s9, s9, s10")
e("s_lshl_b32 s10, s7, 9")
e("s_add_u32 s9, s9, s10")
e("s_add_u32 s9, s9, %d" % W_OP)
e("v_and_b32 v5, 31, v2")
e("v_lshlrev_b32 v5, 4, v5")
e("v_add_u32 v5, s9, v5")
e("s_lshl_b32 s9, s8, 4")
e("s_add_u32 s9, s9, s5")
e("s_lshl_b32 s9, s9, 4")
e("s_add_u32 s9, s9, %d" % W_ML)
e("v_mov_b32 v6, s9")
e("s_mov_b32 exec_lo, -1")
e("s_mov_b32 exec_hi, 0")
e("global_store_dwordx4 v5, %s, s[38:39] sc1" % vr(G, 4))
e("s_cmp_eq_u32 s7, 0")
e("s_cbranch_scc0 L_noml")
e("s_mov_b64 exec, 1")
e("global_store_dwordx4 v6, %s, s[38:39] sc1" % vr(G + 4, 4))
lab("L_noml")
e("s_mov_b64 exec, -1")
signal(F_AP, vT, vT + 1)
stamp(8)
stamp_flush(9, 96)
e("s_endpgm")

lab("L_nonce")
e("v_mov_b32 v3, 0")
e("v_mov_b32 v6, %d" % L_FLG)
for k in range(4):
    e("v_mov_b32 v%d, 0" % (12 + k))
e("ds_write_b128 v6, v[12:15]")
e("ds_write_b128 v6, v[12:15] offset:16")
e("ds_write_b128 v6, v[12:15] offset:32")
e("ds_write_b128 v6, v[12:15] offset:48")
e("s_and_b32 s6, s2, 31")
e("s_cmp_lg_u32 s6, 0")
e("s_cbranch_scc1 L_nl")
e("s_memrealtime s[6:7]")
e("s_waitcnt lgkmcnt(0)")
e("s_or_b32 s6, s6, 1")
e("v_mov_b32 v4, s6")
e("v_mov_b32 v5, s7")
e("v_mov_b32 v6, 0")
e("v_mov_b32 v7, 0")
e("s_mov_b64 exec, 1")
e("global_atomic_cmpswap_x2 v[8:9], v3, v[4:7], s[36:37] sc0 sc1")
e("s_mov_b64 exec, -1")
e("s_barrier")
e("s_waitcnt vmcnt(0)")
e("v_readfirstlane_b32 s8, v8")
e("v_readfirstlane_b32 s9, v9")
e("s_nop 3")
e("s_cmp_lg_u32 s8, 0")
e("s_cselect_b32 s6, s8, s6")
e("s_cselect_b32 s7, s9, s7")
e("v_mov_b32 v8, s6")
e("v_mov_b32 v9, s7")
e("s_branch L_npub")
lab("L_nl")
e("s_mov_b32 s60, 0")
e("global_load_dwordx2 v[8:9], v3, s[36:37] sc1")
e("s_waitcnt lgkmcnt(0)")
e("s_barrier")
lab("L_npoll")
e("s_waitcnt vmcnt(0)")
e("v_readfirstlane_b32 s8, v8")
e("s_nop 3")
e("s_cmp_lg_u32 s8, 0")
e("s_cbranch_scc1 L_npub")
e("s_add_u32 s60, s60, 1")
e("s_cmp_ge_u32 s60, %d" % SPIN_LIMIT)
e("s_cbranch_scc1 L_npub")
e("global_load_dwordx2 v[8:9], v3, s[36:37] sc1")
e("s_branch L_npoll")
lab("L_npub")
e("v_mov_b32 v7, %d" % L_NONCE)
e("ds_write_b64 v7, v[8:9]")
signal(F_NON, 10, 11)
e("s_endpgm")

lab("L_comm")
vX = 8
vA = 8
vXN = 16
vXr = 16
vWq = 32
vGu = 48
vWo = 32
vWd = 48
aQ = 64
aG = 80
vTT = 96
vG4 = 108
vXo = 124
vOut = 125

stamp(0)
e("s_sub_u32 s3, s3, 8")
e("v_and_b32 v3, 255, v0")
e("v_lshlrev_b32 v4, 4, v2")
e("global_load_dwordx4 %s, v4, s[16:17]" % vr(vX, 4))
e("global_load_dwordx4 %s, v4, s[16:17] offset:1024" % vr(vX + 4, 4))
e("s_and_b32 s6, s2, 7")
e("s_lshr_b32 s7, s2, 7")
e("s_lshl_b32 s7, s7, 1")
e("s_bfe_u32 s8, s2, 0x10003")
e("s_or_b32 s7, s7, s8")
e("s_and_b32 s8, s4, 7")
e("s_lshl_b32 s9, s7, 20")
e("s_lshl_b32 s10, s8, 10")
e("s_add_u32 s9, s9, s10")
e("s_lshl_b32 s10, s6, 7")
e("s_add_u32 s9, s9, s10")
e("s_add_u32 s40, s22, s9")
e("s_addc_u32 s41, s23, 0")
e("v_lshrrev_b32 v5, 3, v3")
e("v_and_b32 v6, 7, v3")
e("v_lshlrev_b32 v7, 13, v5")
e("v_lshl_add_u32 v7, v6, 4, v7")
for j in range(4):
    e("global_load_dwordx4 %s, v7, s[40:41] nt" % vr(vWq + 4 * j, 4))
    if j < 3:
        e("v_add_u32 v7, 0x40000, v7")
e("s_and_b32 s11, s2, 3")
e("s_bfe_u32 s12, s2, 0x10002")
e("s_lshr_b32 s13, s2, 3")
e("s_cmp_ge_u32 s2, 224")
e("s_cbranch_scc1 L_nogu0")
e("s_cmp_eq_u32 s12, 0")
e("s_cselect_b32 s42, s28, s30")
e("s_cselect_b32 s43, s29, s31")
e("s_mul_i32 s9, s11, %d" % (128 * 3584))
e("s_lshl_b32 s10, s13, 7")
e("s_add_u32 s9, s9, s10")
e("s_add_u32 s42, s42, s9")
e("s_addc_u32 s43, s43, 0")
e("s_movk_i32 s9, 3584")
e("v_mul_lo_u32 v7, v5, s9")
e("v_lshl_add_u32 v7, v6, 4, v7")
for j in range(4):
    e("global_load_dwordx4 %s, v7, s[42:43] nt" % vr(vGu + 4 * j, 4))
    if j < 3:
        e("v_add_u32 v7, %d, v7" % (32 * 3584))
lab("L_nogu0")
e("v_and_b32 v7, 3, v2")
e("s_lshl_b32 s9, s2, 2")
e("v_add_u32 v7, s9, v7")
e("v_lshlrev_b32 v%d, 1, v7" % vOut)
e("global_load_ushort v%d, v%d, s[16:17]" % (vXo, vOut))
e("s_barrier")
e("s_cmp_ge_u32 s2, 224")
e("s_cbranch_scc1 L_w5")
e("s_waitcnt vmcnt(9)")
e("s_branch L_wd")
lab("L_w5")
e("s_waitcnt vmcnt(5)")
lab("L_wd")
stamp(1)
for b in range(2):
    for d in range(4):
        src = vX + 4 * b + d
        e("v_lshlrev_b32 v%d, 16, v%d" % (vXN + (2 * d) * 2 + b, src))
        e("v_and_b32 v%d, 0xffff0000, v%d" % (vXN + (2 * d + 1) * 2 + b, src))
for b in range(2):
    s_ = vTT + b
    e("v_add_f32 v%d, v%d, v%d" % (s_, vXN + b, vXN + 2 + b))
    for i in range(2, 8):
        e("v_add_f32 v%d, v%d, v%d" % (s_, s_, vXN + 2 * i + b))
for b in range(2):
    red16("v_add_f32", vTT + b)
    red_rows("v_add_f32", vTT + b, vTT + 8)
    e("v_mul_f32 v%d, %s, v%d" % (vTT + b, f2h(1.0 / 512), vTT + b))
for b in range(2):
    s_ = vTT + 2 + b
    for i in range(8):
        e("v_sub_f32 v%d, v%d, v%d" % (vTT + 8, vXN + 2 * i + b, vTT + b))
        if i == 0:
            e("v_mul_f32 v%d, v%d, v%d" % (s_, vTT + 8, vTT + 8))
        else:
            e("v_fmac_f32 v%d, v%d, v%d" % (s_, vTT + 8, vTT + 8))
for b in range(2):
    red16("v_add_f32", vTT + 2 + b)
    red_rows("v_add_f32", vTT + 2 + b, vTT + 8)
    e("v_mul_f32 v%d, %s, v%d" % (vTT + 2 + b, f2h(1.0 / 512), vTT + 2 + b))
    rnd_bf16(vTT + b, vTT + b)
    rnd_bf16(vTT + 2 + b, vTT + 2 + b)
    e("v_add_f32 v%d, %s, v%d" % (vTT + 2 + b, EPS, vTT + 2 + b))
    rnd_bf16(vTT + 2 + b, vTT + 2 + b)
    e("v_sqrt_f32 v%d, v%d" % (vTT + 2 + b, vTT + 2 + b))
    e("s_nop 0")
    rnd_bf16(vTT + 2 + b, vTT + 2 + b)
    e("v_rcp_f32 v%d, v%d" % (vTT + 4 + b, vTT + 2 + b))
    e("s_nop 0")
for b in range(2):
    for i in range(8):
        x = vXN + 2 * i + b
        e("v_sub_f32 v%d, v%d, v%d" % (x, x, vTT + b))
        rnd_bf16(x, x)
        e("v_mul_f32 v%d, v%d, v%d" % (vTT + 8, x, vTT + 4 + b))
        e("v_fma_f32 v%d, -v%d, v%d, v%d" % (vTT + 9, vTT + 8, vTT + 2 + b, x))
        e("v_fma_f32 v%d, v%d, v%d, v%d" % (x, vTT + 9, vTT + 4 + b, vTT + 8))
        rnd_bf16(x, x)
e("v_lshlrev_b32 v7, 6, v2")
e("v_add_u32 v7, %d, v7" % L_XN)
for k in range(4):
    e("ds_write_b128 v7, %s offset:%d" % (vr(vXN + 4 * k, 4), 16 * k))
e("s_waitcnt lgkmcnt(0)")
e("s_lshl_b32 s9, s7, 10")
e("s_add_u32 s9, s9, %d" % L_XN)
e("v_lshlrev_b32 v7, 3, v5")
e("v_add_u32 v6, s9, v7")
for j in range(4):
    e("ds_read_b64 %s, v6 offset:%d" % (vr(vXr + 2 * j, 2), j * 256))
e("s_lshl_b32 s9, s11, 10")
e("s_add_u32 s9, s9, %d" % L_XN)
e("v_add_u32 v6, s9, v7")
for j in range(4):
    e("ds_read_b64 %s, v6 offset:%d" % (vr(vXr + 8 + 2 * j, 2), j * 256))
e("s_cmp_ge_u32 s2, 224")
e("s_cbranch_scc1 L_w1")
e("s_waitcnt vmcnt(5) lgkmcnt(0)")
e("s_branch L_w1d")
lab("L_w1")
e("s_waitcnt vmcnt(1) lgkmcnt(0)")
lab("L_w1d")
stamp(2)


def tile_fma(acc, wv, xr):
    for j in range(4):
        for d in range(4):
            src = wv + 4 * j + d
            e("v_lshlrev_b32 v%d, 16, v%d" % (vTT, src))
            e("v_and_b32 v%d, 0xffff0000, v%d" % (vTT + 1, src))
            for b in range(2):
                for h in range(2):
                    a_ = acc + b * 8 + 2 * d + h
                    if j == 0:
                        e("v_mul_f32 v%d, v%d, v%d" % (a_, xr + 2 * j + b, vTT + h))
                    else:
                        e("v_fmac_f32 v%d, v%d, v%d" % (a_, xr + 2 * j + b, vTT + h))


def red_write(acc, tl):
    e("s_nop 1")
    for k in range(16):
        e("v_add_f32_dpp v%d, v%d, v%d row_shr:8 row_mask:0xf bank_mask:0xf bound_ctrl:0" % (acc + k, acc + k, acc + k))
    e("v_lshrrev_b32 v6, 4, v2")
    e("s_lshl_b32 s9, s3, 2")
    e("v_add_u32 v6, s9, v6")
    e("v_lshlrev_b32 v6, 9, v6")
    e("v_and_b32 v7, 7, v2")
    e("v_lshl_add_u32 v6, v7, 5, v6")
    e("v_add_u32 v6, %d, v6" % L_RED)
    e("v_and_b32 v7, 8, v2")
    e("v_cmp_ne_u32 vcc, 0, v7")
    e("s_nop 1")
    e("s_and_saveexec_b64 s[48:49], vcc")
    for b in range(2):
        for h in range(2):
            e("ds_write_b128 v6, %s offset:%d" % (vr(acc + b * 8 + 4 * h, 4), tl * 8192 + b * 256 + h * 16))
    e("s_mov_b64 exec, s[48:49]")


tile_fma(aQ, vWq, vXr)
red_write(aQ, 0)
stamp(3)
signal(F_RED, vTT, vTT + 1)
wait_flag(F_NON, 1, vTT, vTT + 1)
e("v_mov_b32 v7, %d" % L_NONCE)
e("ds_read_b64 v[4:5], v7")
e("s_waitcnt lgkmcnt(0)")
e("v_readfirstlane_b32 s50, v4")
e("v_readfirstlane_b32 s51, v5")
e("s_cmp_eq_u32 s3, 0")
e("s_cbranch_scc0 L_notq")
e("s_lshl_b32 s9, s8, 2")
e("s_add_u32 s9, s9, s7")
e("s_lshl_b32 s9, s9, 13")
e("s_lshl_b32 s10, s6, 9")
e("s_add_u32 s9, s9, s10")
e("s_add_u32 s9, s9, %d" % W_QP)
e("v_lshrrev_b32 v6, 5, v2")
e("v_and_b32 v7, 31, v2")
e("v_lshlrev_b32 v6, 12, v6")
e("v_lshl_add_u32 v6, v7, 4, v6")
e("v_add_u32 v4, s9, v6")
e("v_lshlrev_b32 v6, 3, v2")
e("v_add_u32 v6, %d, v6" % L_RED)
wait_flag(F_RED, 4, vTT, vTT + 1)
stamp(4)
for gi in range(16):
    e("ds_read_b64 %s, v6 offset:%d" % (vr(aQ + 2 * gi, 2), gi * 512))
e("s_waitcnt lgkmcnt(0)")
e("v_add_f32 v%d, v%d, v%d" % (vG4, aQ, aQ + 2))
e("v_add_f32 v%d, v%d, v%d" % (vG4 + 1, aQ + 1, aQ + 3))
for gi in range(2, 16):
    e("v_add_f32 v%d, v%d, v%d" % (vG4, vG4, aQ + 2 * gi))
    e("v_add_f32 v%d, v%d, v%d" % (vG4 + 1, vG4 + 1, aQ + 2 * gi + 1))
e("v_mov_b32 v%d, s50" % (vG4 + 2))
e("v_mov_b32 v%d, s51" % (vG4 + 3))
e("global_store_dwordx4 v4, %s, s[38:39] sc1" % vr(vG4, 4))
stamp(5)
signal(F_PUB, vTT, vTT + 1)
lab("L_notq")
e("s_cmp_ge_u32 s2, 224")
e("s_cbranch_scc1 L_pubdone")
e("s_waitcnt vmcnt(1)")
tile_fma(aG, vGu, vXr + 8)
red_write(aG, 1)
signal(F_RG, vTT, vTT + 1)
e("s_cmp_eq_u32 s3, 1")
e("s_cbranch_scc0 L_pubdone")
e("s_lshl_b32 s9, s12, 2")
e("s_add_u32 s9, s9, s11")
e("s_mul_i32 s9, s9, 1792")
e("s_lshl_b32 s10, s13, 6")
e("s_add_u32 s9, s9, s10")
e("s_lshl_b32 s9, s9, 4")
e("s_add_u32 s9, s9, %d" % W_GU)
e("v_lshlrev_b32 v4, 4, v2")
e("v_add_u32 v4, s9, v4")
e("v_lshlrev_b32 v6, 2, v2")
e("v_add_u32 v6, %d, v6" % (L_RED + 8192))
wait_flag(F_RG, 4, vTT, vTT + 1)
for gi in range(16):
    e("ds_read_b32 v%d, v6 offset:%d" % (aQ + 2 * gi, gi * 512))
    e("ds_read_b32 v%d, v6 offset:%d" % (aQ + 2 * gi + 1, gi * 512 + 256))
e("s_waitcnt lgkmcnt(0)")
e("v_add_f32 v%d, v%d, v%d" % (vG4, aQ, aQ + 2))
e("v_add_f32 v%d, v%d, v%d" % (vG4 + 1, aQ + 1, aQ + 3))
for gi in range(2, 16):
    e("v_add_f32 v%d, v%d, v%d" % (vG4, vG4, aQ + 2 * gi))
    e("v_add_f32 v%d, v%d, v%d" % (vG4 + 1, vG4 + 1, aQ + 2 * gi + 1))
e("v_mov_b32 v%d, s50" % (vG4 + 2))
e("v_mov_b32 v%d, s51" % (vG4 + 3))
e("global_store_dwordx4 v4, %s, s[38:39] sc1" % vr(vG4, 4))
lab("L_pubdone")
vML = 56
vOr = 56
vGa = (16, 108)
e("s_lshr_b32 s14, s2, 3")
e("s_and_b32 s15, s2, 7")
e("v_lshrrev_b32 v5, 3, v3")
e("v_and_b32 v6, 7, v3")
e("v_lshlrev_b32 v4, 10, v5")
e("v_lshl_add_u32 v4, v6, 4, v4")
e("s_lshl_b32 s9, s14, 17")
e("s_lshl_b32 s10, s15, 7")
e("s_add_u32 s9, s9, s10")
e("s_add_u32 s64, s24, s9")
e("s_addc_u32 s65, s25, 0")
def wloads():
    e("v_mov_b32 v7, v4")
    for j in range(4):
        e("global_load_dwordx4 %s, v7, s[64:65] nt" % vr(vWo + 4 * j, 4))
        if j < 3:
            e("v_add_u32 v7, 0x8000, v7")
    e("s_mul_i32 s9, s14, %d" % (56 * 1024))
    e("s_add_u32 s9, s9, s10")
    e("s_add_u32 s44, s32, s9")
    e("s_addc_u32 s45, s33, 0")
    e("global_load_dwordx4 %s, v4, s[44:45] nt" % vr(vWd, 4))
    e("v_add_u32 v7, 0x8000, v4")
    e("v_cmp_gt_u32 vcc, 24, v5")
    e("s_nop 1")
    e("v_cndmask_b32 v7, v4, v7, vcc")
    e("global_load_dwordx4 %s, v7, s[44:45] nt" % vr(vWd + 4, 4))


if OPT.get("WL", "0") == "0":
    wloads()
e("v_lshrrev_b32 v6, 2, v3")
e("v_min_u32 v6, 55, v6")
e("v_and_b32 v7, 3, v3")
e("s_movk_i32 s9, 1792")
e("v_mul_lo_u32 v7, v7, s9")
e("v_add_u32 v7, v7, v6")
e("s_mul_i32 s9, s14, 56")
e("v_add_u32 v7, s9, v7")
e("v_lshlrev_b32 v7, 4, v7")
e("v_add_u32 v%d, %d, v7" % (vA, W_GU))
e("v_add_u32 v%d, %d, v7" % (vA + 1, W_GU + 4 * 1792 * 16))
poll(["global_load_dwordx4 %s, v%d, s[38:39] sc1" % (vr(vG4, 4), vA),
      "global_load_dwordx4 %s, v%d, s[38:39] sc1" % (vr(vG4 + 4, 4), vA + 1)], [vG4, vG4 + 4], vTT)
for qp in ("[1,0,3,2]", "[2,3,0,1]"):
    e("s_nop 1")
    for k in (0, 1, 4, 5):
        e("v_add_f32_dpp v%d, v%d, v%d quad_perm:%s row_mask:0xf bank_mask:0xf" % (vG4 + k, vG4 + k, vG4 + k, qp))
for k in (0, 1, 4, 5):
    rnd_bf16(vG4 + k, vG4 + k)
e("s_mov_b32 s47, %s" % LOG2E)
for k in range(2):
    e("v_mul_f32 v%d, -v%d, s47" % (vTT, vG4 + k))
    e("v_exp_f32 v%d, v%d" % (vTT, vTT))
    e("s_nop 0")
    e("v_add_f32 v%d, 1.0, v%d" % (vTT, vTT))
    e("v_rcp_f32 v%d, v%d" % (vTT, vTT))
    e("s_nop 0")
    e("v_mul_f32 v%d, v%d, v%d" % (vTT, vTT, vG4 + k))
    rnd_bf16(vTT, vTT)
    e("v_mul_f32 v%d, v%d, v%d" % (vTT, vTT, vG4 + 4 + k))
    rnd_bf16(vG4 + 8 + k, vTT)
e("v_lshlrev_b32 v6, 3, v6")
e("v_add_u32 v6, %d, v6" % L_HH)
e("ds_write_b64 v6, %s" % vr(vG4 + 8, 2))
signal(F_H, vTT, vTT + 1)
e("v_bfe_u32 v6, v2, 4, 1")
e("v_and_b32 v7, 15, v2")
e("v_lshlrev_b32 v6, 13, v6")
e("v_lshl_add_u32 v6, v7, 4, v6")
e("s_lshl_b32 s9, s14, 8")
e("s_add_u32 s9, s9, %d" % W_ML)
e("v_add_u32 v%d, s9, v6" % (vA + 2))
e("s_lshl_b32 s9, s14, 14")
e("s_lshl_b32 s10, s3, 12")
e("s_add_u32 s9, s9, s10")
e("s_add_u32 s9, s9, %d" % W_OP)
e("v_lshlrev_b32 v6, 4, v2")
e("v_add_u32 v%d, s9, v6" % vA)
e("v_add_u32 v%d, 0x80000, v%d" % (vA + 1, vA))
wait_flag(F_H, 4, vTT, vTT + 1)
if OPT.get("WL", "0") != "0":
    if OPT["WL"] == "1":
        wait_flag(F_VL, int(OPT.get("WLN", 8)), vTT, vTT + 1)
    elif OPT["WL"] == "2":
        wait_flag(F_M, 8, vTT, vTT + 1)
    else:
        wait_flag(F_Q, 8, vTT, vTT + 1)
    e("s_lshl_b32 s10, s15, 7")
    wloads()
e("v_lshlrev_b32 v6, 3, v5")
e("v_add_u32 v6, %d, v6" % L_HH)
e("ds_read_b64 %s, v6" % vr(vTT + 4, 2))
e("ds_read_b64 %s, v6 offset:256" % vr(vTT + 6, 2))
e("s_waitcnt lgkmcnt(0)")
e("v_cmp_gt_u32 vcc, 24, v5")
e("s_nop 1")
e("v_cndmask_b32 v%d, 0, v%d, vcc" % (vTT + 6, vTT + 6))
e("v_cndmask_b32 v%d, 0, v%d, vcc" % (vTT + 7, vTT + 7))
e("s_waitcnt vmcnt(0)")
for j in range(2):
    for d in range(4):
        src = vWd + 4 * j + d
        e("v_lshlrev_b32 v%d, 16, v%d" % (vTT, src))
        e("v_and_b32 v%d, 0xffff0000, v%d" % (vTT + 1, src))
        for b_ in range(2):
            for h in range(2):
                a_ = aG + b_ * 8 + 2 * d + h
                if j == 0:
                    e("v_mul_f32 v%d, v%d, v%d" % (a_, vTT + 4 + 2 * j + b_, vTT + h))
                else:
                    e("v_fmac_f32 v%d, v%d, v%d" % (a_, vTT + 4 + 2 * j + b_, vTT + h))
red_write(aG, 1)
signal(F_RB, vTT, vTT + 1)
vBs = 126
e("s_cmp_ge_u32 s3, 2")
e("s_cbranch_scc1 L_nobs")
e("v_lshlrev_b32 v6, 2, v3")
e("v_add_u32 v6, %d, v6" % (L_RED + 8192))
wait_flag(F_RB, 4, vTT, vTT + 1)
for gi in range(16):
    e("ds_read_b32 v%d, v6 offset:%d" % (aG + gi, gi * 512))
e("s_waitcnt lgkmcnt(0)")
e("v_add_f32 v%d, v%d, v%d" % (vBs, aG, aG + 1))
for gi in range(2, 16):
    e("v_add_f32 v%d, v%d, v%d" % (vBs, vBs, aG + gi))
lab("L_nobs")
vWu = (80, 88, 32, 40)
for j in range(2):
    for d in range(4):
        e("v_lshlrev_b32 v%d, 16, v%d" % (vWu[j] + 2 * d, vWo + 4 * j + d))
        e("v_and_b32 v%d, 0xffff0000, v%d" % (vWu[j] + 2 * d + 1, vWo + 4 * j + d))
for k in range(8):
    e("v_mov_b32 v%d, v%d" % (vTT + k, vWo + 8 + k))
for j in range(2, 4):
    for d in range(4):
        e("v_lshlrev_b32 v%d, 16, v%d" % (vWu[j] + 2 * d, vTT + 4 * (j - 2) + d))
        e("v_and_b32 v%d, 0xffff0000, v%d" % (vWu[j] + 2 * d + 1, vTT + 4 * (j - 2) + d))
stamp(6)
stamp(7)
wait_flag(F_AP, 8, vTT, vTT + 1)
lds = ["global_load_dwordx4 %s, v%d, s[38:39] sc1" % (vr(vML, 4), vA + 2)]
gr = [vML]
for b_ in range(2):
    for i in range(4):
        lds.append("global_load_dwordx4 %s, v%d, s[38:39] offset:%d sc1" % (vr(vGa[b_] + 4 * i, 4), vA + b_, 1024 * i))
        gr.append(vGa[b_] + 4 * i)
poll(lds, gr, vTT, sleep=int(OPT.get("S3", 1)))
stamp(8)
if STAMP:
    e("s_mov_b32 s85, s60")
e("v_mov_b32 v%d, v%d" % (vTT + 2, vML))
red16("v_max_f32", vTT + 2)
e("v_sub_f32 v%d, v%d, v%d" % (vTT + 3, vML, vTT + 2))
e("v_mul_f32 v%d, s47, v%d" % (vTT + 3, vTT + 3))
e("v_exp_f32 v%d, v%d" % (vTT + 3, vTT + 3))
e("s_lshl_b32 s9, s3, 2")
e("v_mul_f32 v%d, v%d, v%d" % (vTT + 4, vML + 1, vTT + 3))
red16("v_add_f32", vTT + 4)
e("v_rcp_f32 v%d, v%d" % (vTT + 4, vTT + 4))
for b_ in range(2):
    for i in range(4):
        e("s_add_u32 s10, s9, %d" % (b_ * 16 + i))
        e("s_nop 0")
        e("v_readlane_b32 s%d, v%d, s10" % (52 + b_ * 4 + i, vTT + 3))
e("v_readlane_b32 s62, v%d, 0" % (vTT + 4))
e("v_readlane_b32 s63, v%d, 16" % (vTT + 4))
e("s_nop 1")
for b_ in range(2):
    for k in range(2):
        dst = vTT + 4 + 2 * k + b_
        e("v_mul_f32 v%d, s%d, v%d" % (dst, 52 + b_ * 4, vGa[b_] + k))
        for i in range(1, 4):
            e("v_fmac_f32 v%d, s%d, v%d" % (dst, 52 + b_ * 4 + i, vGa[b_] + 4 * i + k))
e("s_lshl_b32 s9, s3, 10")
e("s_add_u32 s9, s9, %d" % L_OC)
e("v_lshlrev_b32 v6, 4, v2")
e("v_add_u32 v6, s9, v6")
e("ds_write_b128 v6, %s" % vr(vTT + 4, 4))
signal(F_OC, vTT, vTT + 1)
e("v_lshlrev_b32 v6, 3, v5")
e("v_add_u32 v6, %d, v6" % L_OC)
wait_flag(F_OC, 4, vTT, vTT + 1)
for j in range(4):
    for cc in range(4):
        e("ds_read_b64 %s, v6 offset:%d" % (vr(vGa[j >> 1] + (j & 1) * 8 + 2 * cc, 2), cc * 1024 + j * 256))
e("s_waitcnt lgkmcnt(0)")
for j in range(4):
    base = vGa[j >> 1] + (j & 1) * 8
    for b_ in range(2):
        o = vOr + 2 * j + b_
        e("v_add_f32 v%d, v%d, v%d" % (o, base + b_, base + 2 + b_))
        e("v_add_f32 v%d, v%d, v%d" % (vTT, base + 4 + b_, base + 6 + b_))
        e("v_add_f32 v%d, v%d, v%d" % (o, o, vTT))
        e("v_mul_f32 v%d, s%d, v%d" % (o, 62 + b_, o))
        rnd_bf16(o, o)
for j in range(4):
    for b_ in range(2):
        for p in range(4):
            a_ = aQ + b_ * 8 + 2 * p
            src2 = "0" if j == 0 else vr(a_, 2)
            if j == 0:
                e("v_pk_mul_f32 %s, %s, %s op_sel:[0,%d] op_sel_hi:[1,%d]" % (vr(a_, 2), vr(vWu[j] + 2 * p, 2), vr(vOr + 2 * j, 2), b_, b_))
            else:
                e("v_pk_fma_f32 %s, %s, %s, %s op_sel:[0,%d,0] op_sel_hi:[1,%d,1]" % (vr(a_, 2), vr(vWu[j] + 2 * p, 2), vr(vOr + 2 * j, 2), vr(a_, 2), b_, b_))
red_write(aQ, 0)
signal(F_R2, vTT, vTT + 1)
e("s_cmp_ge_u32 s3, 2")
e("s_cbranch_scc1 L_cend")
e("v_lshlrev_b32 v6, 2, v3")
e("v_add_u32 v6, %d, v6" % L_RED)
e("s_mul_i32 s9, s2, %d" % FPS)
e("s_add_u32 s9, s9, %d" % W_FP)
e("v_lshlrev_b32 v4, 4, v3")
e("v_add_u32 v4, s9, v4")
wait_flag(F_R2, 4, vTT, vTT + 1)
stamp(9)
for gi in range(16):
    e("ds_read_b32 v%d, v6 offset:%d" % (16 + gi, gi * 512))
e("v_mov_b32 v%d, v%d" % (vG4 + 1, vBs))
e("s_waitcnt lgkmcnt(0)")
for st_ in (8, 4, 2, 1):
    for k in range(st_):
        e("v_add_f32 v%d, v%d, v%d" % (16 + k, 16 + k, 16 + k + st_))
e("v_mov_b32 v%d, v16" % vG4)
e("v_mov_b32 v%d, s50" % (vG4 + 2))
e("v_mov_b32 v%d, s51" % (vG4 + 3))
e("global_store_dwordx4 v4, %s, s[38:39] sc1" % vr(vG4, 4))
e("s_cmp_eq_u32 s3, 0")
e("s_cbranch_scc0 L_cend")
e("s_lshl_b32 s9, s2, 2")
e("s_and_b32 s9, s9, 511")
e("s_lshr_b32 s10, s9, 6")
e("s_and_b32 s9, s9, 63")
e("s_lshr_b32 s11, s2, 7")
e("s_lshl_b32 s11, s11, 6")
e("s_add_u32 s9, s9, s11")
e("s_lshl_b32 s9, s9, 4")
e("s_mul_i32 s10, s10, %d" % FPS)
e("s_add_u32 s9, s9, s10")
e("s_add_u32 s9, s9, %d" % W_FP)
e("v_lshrrev_b32 v5, 2, v2")
e("v_and_b32 v7, 3, v2")
e("s_movk_i32 s10, %d" % (8 * FPS))
e("v_mul_lo_u32 v5, v5, s10")
e("v_lshl_add_u32 v5, v7, 4, v5")
e("v_add_u32 v%d, s9, v5" % vA)
e("v_add_u32 v%d, %d, v%d" % (vA + 1, 128 * FPS, vA))
poll(["global_load_dwordx4 %s, v%d, s[38:39] sc1" % (vr(16 + 4 * k, 4), vA + k) for k in range(2)],
     [16, 20], vTT, sleep=int(OPT.get("S4", 1)))
stamp(10)
if STAMP:
    e("s_mov_b32 s84, s60")
e("v_add_f32 v%d, v16, v20" % vG4)
e("v_add_f32 v%d, v17, v21" % (vG4 + 1))
for n in (8, 4):
    e("s_nop 1")
    for k in range(2):
        e("v_add_f32_dpp v%d, v%d, v%d row_ror:%d row_mask:0xf bank_mask:0xf" % (vG4 + k, vG4 + k, vG4 + k, n))
for k in range(2):
    red_rows("v_add_f32", vG4 + k, vTT)
rnd_bf16(vG4, vG4)
rnd_bf16(vG4 + 1, vG4 + 1)
e("v_lshlrev_b32 v%d, 16, v%d" % (vXo, vXo))
e("v_add_f32 v%d, v%d, v%d" % (vG4, vXo, vG4))
rnd_bf16(vG4, vG4)
e("v_add_f32 v%d, v%d, v%d" % (vG4, vG4, vG4 + 1))
e("v_cvt_pk_bf16_f32 v%d, v%d, v%d" % (vG4, vG4, vG4))
e("s_mov_b64 exec, 15")
e("global_store_short v%d, v%d, s[34:35]" % (vOut, vG4))
e("s_mov_b64 exec, -1")
stamp(11)
lab("L_cend")
stamp_flush(14, 64)
lab("L_end")
e("s_endpgm")

out.append(""".section .rodata,"a"
.p2align 6
.amdhsa_kernel %s_kernel
  .amdhsa_next_free_vgpr %d
  .amdhsa_next_free_sgpr 96
  .amdhsa_accum_offset %d
  .amdhsa_group_segment_fixed_size 0
  .amdhsa_kernarg_size 96
  .amdhsa_user_sgpr_count 2
  .amdhsa_user_sgpr_kernarg_segment_ptr 1
  .amdhsa_system_sgpr_workgroup_id_x 1
.end_amdhsa_kernel""" % (NAME, NV, NV))

open(sys.argv[1], "w").write("\n".join(out) + "\n")
```
